```python
import torch

def _softmax(x, axis=-1):
    return torch.softmax(x, dim=axis)
def _gelu(x):
    return torch.nn.functional.gelu(x, approximate="tanh")
def _silu(x):
    return torch.nn.functional.silu(x)
def _sigmoid(x):
    return torch.sigmoid(x)
def _layernorm(x, axis=-1, eps=1e-5):
    m = x.mean(dim=axis, keepdim=True)
    v = x.var(dim=axis, keepdim=True, unbiased=False)
    return (x - m) / torch.sqrt(v + eps)
def _scatter_add(tgt, idx, src, axis=0):
    return tgt.clone().index_add_(axis, idx, src)
def _segment_sum(src, seg, n):
    out = torch.zeros((n,) + src.shape[1:], dtype=src.dtype)
    return out.index_add_(0, seg, src)
def _pad(x, pw):
    flat = tuple(v for pair in reversed(pw) for v in pair)
    return torch.nn.functional.pad(x, flat)

kernel_name = 'concat_heads__spectral_fnet__softmax_full_mha__prompt'

def setup_inputs():

    _w = (lambda a: (lambda t: t.to(torch.bfloat16) if t.is_floating_point() else t)(torch.as_tensor(a)))
    def _A_setup():
        B, S, D = 1, 2048, 512
        ns = torch.arange(S)[:, None] * torch.arange(S)[None, :]
        nd = torch.arange(D)[:, None] * torch.arange(D)[None, :]
        Ws_re = torch.cos(-2.0 * torch.pi * ns / S).to(float)
        Ws_im = torch.sin(-2.0 * torch.pi * ns / S).to(float)
        Wd_re = torch.cos(-2.0 * torch.pi * nd / D).to(float)
        Wd_im = torch.sin(-2.0 * torch.pi * nd / D).to(float)
        return {
            "x": _w((lambda *s: torch.randn(*s, dtype=torch.bfloat16) * 0.05)(B, S, D)),
            "dft_seq_re": _w(Ws_re),
            "dft_seq_im": _w(Ws_im),
            "dft_hid_re": _w(Wd_re),
            "dft_hid_im": _w(Wd_im),
        }
    _A_in = _A_setup()

    def _B_setup():
        B, S, D = 1, 2048, 512
        return {
            "x": _w((lambda *s: torch.randn(*s, dtype=torch.bfloat16) * 0.2)(B, S, D)),
            "wqkv": _w((lambda *s: torch.randn(*s, dtype=torch.bfloat16) * 0.8)(D, 3 * D)),
            "wo": _w((lambda *s: torch.randn(*s, dtype=torch.bfloat16) * 0.2)(D, D)),
        }
    _B_in = _B_setup()

    return {
        "A_x": _A_in["x"],
        "A_dft_seq_re": _A_in["dft_seq_re"],
        "A_dft_seq_im": _A_in["dft_seq_im"],
        "A_dft_hid_re": _A_in["dft_hid_re"],
        "A_dft_hid_im": _A_in["dft_hid_im"],
        "B_x": _B_in["x"],
        "B_wqkv": _B_in["wqkv"],
        "B_wo": _B_in["wo"],
    }

def reference(A_x, A_dft_seq_re, A_dft_seq_im, A_dft_hid_re, A_dft_hid_im, B_x, B_wqkv, B_wo):
    def _A_ref(x, dft_seq_re, dft_seq_im, dft_hid_re, dft_hid_im):
        a = torch.einsum("bsd,ed->bse", x, dft_hid_re)
        b = torch.einsum("bsd,ed->bse", x, dft_hid_im)
        y = torch.einsum("ts,bse->bte", dft_seq_re, a) - torch.einsum("ts,bse->bte", dft_seq_im, b)
        return y

    def _B_ref(x, wqkv, wo):
        B, S, D = x.shape
        H = 32; Dh = D // H
        qkv = (lambda x, *d: x.permute(*d))((x @ wqkv).reshape(B, S, 3, H, Dh), 2, 0, 3, 1, 4)
        q, k, v = qkv[0], qkv[1], qkv[2]
        scale = Dh ** -0.5
        scores = torch.einsum("bhqd,bhkd->bhqk", q, k) * scale
        p = _softmax(scores, axis=-1)
        o = torch.einsum("bhqk,bhkd->bhqd", p, v)
        return (lambda x, *d: x.permute(*d))(o, 0, 2, 1, 3).reshape(B, S, D) @ wo

    a = _A_ref(A_x, A_dft_seq_re, A_dft_seq_im, A_dft_hid_re, A_dft_hid_im)
    b = _B_ref(B_x, B_wqkv, B_wo)
    return torch.concatenate([a, b], axis=-1)
```

```python
class Asm:
    def __init__(self):
        self.lines = []
    def __call__(self, s=""):
        for l in s.split("\n"):
            l = l.strip()
            if not l: continue
            if l.endswith(":") or l.startswith("."):
                self.lines.append(l)
            else:
                self.lines.append("    " + l)
    def c(self, s):
        self.lines.append("    ; " + s)
    def text(self):
        return "\n".join(self.lines) + "\n"

def vr(a, n):
    return f"v[{a}:{a+n-1}]" if n > 1 else f"v{a}"
def sr(a, n):
    return f"s[{a}:{a+n-1}]" if n > 1 else f"s{a}"

def kernel_header(name):
    return f""".text
.globl {name}
.p2align 8
.type {name},@function
{name}:
"""
def kernel_desc(name, vgpr, sgpr=96, accum=None):
    if accum is None: accum = (vgpr + 3) // 4 * 4
    return f""".section .rodata,"a"
.p2align 6
.amdhsa_kernel {name}
  .amdhsa_next_free_vgpr {vgpr}
  .amdhsa_next_free_sgpr {sgpr}
  .amdhsa_accum_offset {accum}
  .amdhsa_group_segment_fixed_size 0
  .amdhsa_kernarg_size 88
  .amdhsa_user_sgpr_count 2
  .amdhsa_user_sgpr_kernarg_segment_ptr 1
  .amdhsa_system_sgpr_workgroup_id_x 1
  .amdhsa_float_denorm_mode_32 3
.end_amdhsa_kernel
"""
KA_AX, KA_SRE, KA_SIM, KA_HRE, KA_HIM, KA_BX, KA_WQKV, KA_WO, KA_OUT, KA_DBG, KA_WS = [8*i for i in range(11)]
WS_QF = 0x000000
WS_KF = 0x200000
WS_VF = 0x400000
WS_OF = 0x600000
WS_G  = 0x800000
WS_TW = 0xC00000
WS_STAMP = 0xE00000
WS_BYTES = 0x1000000
```

```python
from asmlib import *

LDS_K, LDS_V, LDS_ONES = 0, 65536, 131072
ATT_LDS = 131072 + 10240
vKA, vVA, vIDX, vVST, vT0, vT1, vOFF = 1, 2, 3, 4, 5, 6, 7
vQ, vK, vV0, vV1 = 8, 12, 16, 20
vS = (24, 40)
vC, vO = 56, 72
ATT_VGPR = 88
SHIFT = 40.0
EXPT = {}

def tile(a, t, variant=0):
    cur, nxt = vS[t & 1], vS[(t + 1) & 1]
    e = lambda i: a(f"v_exp_f32 v{cur+i}, v{cur+i}") if not EXPT.get("noexp") else a("s_nop 1")
    if EXPT.get("noqk"): e = lambda i: a(f"v_exp_f32 v{vS[1]+i}, v{vS[0]+(i*7+t)%16}")
    pq, p0 = {0: (4, 10), 1: (6, 11), 2: (5, 10), 3: (3, 10)}[variant & 3]
    onewait = variant & 4
    e(0); e(1)
    a("s_waitcnt lgkmcnt(0)" if onewait else "s_waitcnt lgkmcnt(2)")
    if not EXPT.get("nopv"): a(f"v_smfmac_f32_{'16x16x64' if EXPT.get('s16') else '32x32x32'}_bf16 {vr(vO,4 if EXPT.get('s16') else 16)}, {vr(vV1,4)}, {vr(nxt+8,8)}, v{vIDX}")
    if EXPT.get("maskv"): a("s_mov_b64 exec, s[36:37]")
    if not EXPT.get("nopv") and not (EXPT.get("halfds") and t & 1) and not EXPT.get("nods"): a(f"ds_read_b128 {vr(vV1,4)}, v{vVA} offset:{t*1024+512}")
    if EXPT.get("maskv"): a("s_mov_b64 exec, -1")
    for i in range(2, pq): e(i)
    if not onewait: a("s_waitcnt lgkmcnt(2)")
    if not EXPT.get("noqk"): a(f"v_mfma_f32_32x32x16_bf16 {vr(nxt,16)}, {vr(vK,4)}, {vr(vQ,4)}, {vr(vC,16) if not EXPT.get('c0') else 0}")
    if not (EXPT.get("halfds") and t & 1) and not EXPT.get("nods") and not EXPT.get("noqk"): a(f"ds_read_b128 {vr(vK,4)}, v{vKA} offset:{(t+2)*1024}")
    for i in range(pq, p0): e(i)
    if not onewait: a("s_waitcnt lgkmcnt(2)")
    if not EXPT.get("nopv"): a(f"v_smfmac_f32_{'16x16x64' if EXPT.get('s16') else '32x32x32'}_bf16 {vr(vO,4 if EXPT.get('s16') else 16)}, {vr(vV0,4)}, {vr(cur,8)}, v{vIDX}")
    if EXPT.get("maskv"): a("s_mov_b64 exec, s[36:37]")
    if not EXPT.get("nopv") and not (EXPT.get("halfds") and t & 1) and not EXPT.get("nods"): a(f"ds_read_b128 {vr(vV0,4)}, v{vVA} offset:{(t+1)*1024}")
    if EXPT.get("maskv"): a("s_mov_b64 exec, -1")
    for i in range(p0, 16): e(i)

def iteration(a, variant, sync=None):
    for t in range(8):
        if t == 6 and sync is not None:
            a(f"s_waitcnt vmcnt({sync})")
            a("s_barrier")
        tile(a, t, variant)
    a(f"v_add_u32 v{vKA}, 0x2000, v{vKA}")
    a(f"v_add_u32 v{vVA}, v{vVST}, v{vVA}")

def addr_setup(a):
    a(f"""
    v_mov_b32 v{vKA}, v{vOFF}
    v_and_b32 v{vT0}, 0xf0, v{vOFF}          ; d*16
    v_lshrrev_b32 v{vT1}, 1, v{vOFF}
    v_and_b32 v{vT1}, 0x100, v{vT1}          ; ha*256
    v_or_b32 v{vT0}, v{vT0}, v{vT1}
    v_and_b32 v{vT1}, 0x100, v{vOFF}         ; m>=16 -> 256
    v_lshlrev_b32 v{vT1}, 8, v{vT1}
    v_add_u32 v{vT0}, v{vT0}, v{vT1}
    v_add_u32 v{vVA}, {LDS_V}, v{vT0}
    v_lshrrev_b32 v{vT1}, 3, v{vT1}
    v_sub_u32 v{vVST}, 0x2000, v{vT1}
    """)

def prime(a):
    a(f"ds_read_b128 {vr(vK,4)}, v{vKA}")
    for i in range(16): a(f"v_mov_b32 v{vO+i}, 0")
    for i in range(8): a(f"v_mov_b32 v{vS[1]+8+i}, 0")
    for i in range(4): a(f"v_mov_b32 v{vV1+i}, 0")
    a("s_waitcnt lgkmcnt(0)")
    a(f"v_mfma_f32_32x32x16_bf16 {vr(vS[0],16)}, {vr(vK,4)}, {vr(vQ,4)}, {vr(vC,16)}")
    a(f"ds_read_b128 {vr(vK,4)}, v{vKA} offset:1024")
    a(f"ds_read_b128 {vr(vV0,4)}, v{vVA}")
    a("s_nop 11")

def max16(a, dst, src, first):
    if first:
        a(f"v_max3_f32 v{dst}, v{src}, v{src+1}, v{src+2}")
        for i in range(3, 15, 2): a(f"v_max3_f32 v{dst}, v{dst}, v{src+i}, v{src+i+1}")
        a(f"v_max_f32 v{dst}, v{dst}, v{src+15}")
    else:
        for i in range(0, 16, 2): a(f"v_max3_f32 v{dst}, v{dst}, v{src+i}, v{src+i+1}")

def set_c(a, shift):
    a(f"""
    v_mov_b32 v{vT1}, v{vT0}
    s_nop 1
    v_permlane32_swap_b32 v{vT0}, v{vT1}
    s_nop 1
    v_max_f32 v{vT0}, v{vT0}, v{vT1}
    """)
    import struct
    bits = struct.unpack("<I", struct.pack("<f", -shift))[0]
    a(f"v_sub_f32 v{vC}, 0x{bits:08x}, v{vT0}")
    for i in range(1, 16): a(f"v_mov_b32 v{vC+i}, v{vC}")

def attention_core(a, P, variant=0, sCNT=30, sFLAG=31, s0sync=12):
    a(f"""
    ds_read_b128 {vr(vK,4)}, v{vKA}
    ds_read_b128 {vr(vV0,4)}, v{vKA} offset:1024
    s_mov_b32 s{sFLAG}, {1 if EXPT else 0}
    s_mov_b32 s36, 0xffff
    s_mov_b32 s37, 0xffff
    s_waitcnt lgkmcnt(1)
    v_mfma_f32_32x32x16_bf16 {vr(vS[0],16)}, {vr(vK,4)}, {vr(vQ,4)}, 0
    s_waitcnt lgkmcnt(0)
    v_mfma_f32_32x32x16_bf16 {vr(vS[1],16)}, {vr(vV0,4)}, {vr(vQ,4)}, 0
    s_nop 10
    """)
    max16(a, vT0, vS[0], True)
    max16(a, vT0, vS[1], False)
    set_c(a, EXPT.get('shift', SHIFT))
    prime(a)
    iteration(a, variant, sync=s0sync)
    iteration(a, variant, sync=0)
    a(f"s_movk_i32 s{sCNT}, 6")
    a(".p2align 6")
    a(f"{P}_loop:")
    iteration(a, variant)
    a(f"""
    s_sub_u32 s{sCNT}, s{sCNT}, 1
    s_cmp_lg_u32 s{sCNT}, 0
    s_cbranch_scc1 {P}_loop
    s_waitcnt lgkmcnt(0)
    v_smfmac_f32_32x32x32_bf16 {vr(vO,16)}, {vr(vV1,4)}, {vr(vS[1]+8,8)}, v{vIDX}
    s_cmp_lg_u32 s{sFLAG}, 0
    s_cbranch_scc1 {P}_fin
    s_nop 11
    """)
    a.c("safety check of the max stand-in: row sum below 2^100 and all accumulators finite")
    a(f"""
    v_add_f32 v{vT0}, abs(v{vO}), abs(v{vO+1})
    v_add_f32 v{vT0}, v{vT0}, abs(v{vO+2})
    v_add_f32 v{vT0}, v{vT0}, abs(v{vO+3})
    v_add_f32 v{vT0}, v{vT0}, abs(v{vO+4})
    v_add_f32 v{vT0}, v{vT0}, abs(v{vO+5})
    v_add_f32 v{vT0}, v{vT0}, abs(v{vO+6})
    v_add_f32 v{vT0}, v{vT0}, abs(v{vO+7})
    v_mov_b32 v{vT1}, 0x71800000
    v_cmp_nlt_f32 vcc, v{vO+8}, v{vT1}
    v_mov_b32 v{vT1}, 0x7f000000
    v_cmp_nlt_f32 s[32:33], v{vT0}, v{vT1}
    s_nop 1
    s_or_b64 vcc, vcc, s[32:33]
    s_cbranch_scc0 {P}_fin0
    """)
    a.c("fallback: true row max over all keys, then redo the pass")
    addr_setup(a)
    a(f"""
    v_mov_b32 v{vT0}, 0xff800000
    s_movk_i32 s{sCNT}, 64
    {P}_maxloop:
    ds_read_b128 {vr(vK,4)}, v{vKA}
    v_add_u32 v{vKA}, 0x400, v{vKA}
    s_waitcnt lgkmcnt(0)
    v_mfma_f32_32x32x16_bf16 {vr(vS[0],16)}, {vr(vK,4)}, {vr(vQ,4)}, 0
    s_nop 12
    """)
    max16(a, vT0, vS[0], False)
    a(f"""
    s_sub_u32 s{sCNT}, s{sCNT}, 1
    s_cmp_lg_u32 s{sCNT}, 0
    s_cbranch_scc1 {P}_maxloop
    """)
    set_c(a, 0.0)
    a(f"v_mov_b32 v{vKA}, v{vOFF}")
    prime(a)
    a(f"""
    s_mov_b32 s{sFLAG}, 1
    s_movk_i32 s{sCNT}, 8
    s_branch {P}_loop
    {P}_fin:
    s_nop 11
    {P}_fin0:
    v_rcp_f32 v{vT0}, v{vO+8}
    s_nop 0
    """)
    for i in range(8): a(f"v_mul_f32 v{vO+i}, v{vO+i}, v{vT0}")
    for i in range(4): a(f"v_cvt_pk_bf16_f32 v{vO+i}, v{vO+2*i}, v{vO+2*i+1}")

def gen_attn_kernel(name, variant=0, stamps=False):
    a = Asm()
    P = name
    a(f"""
    s_cmp_ge_u32 s2, 256
    s_cbranch_scc1 {P}_end
    """)
    if stamps: a("s_memrealtime s[60:61]\ns_memtime s[62:63]")
    a(f"""
    s_load_dwordx2 s[4:5], s[0:1], {KA_WS}
    v_lshrrev_b32 v{vT0}, 6, v0
    v_and_b32 v{vOFF}, 63, v0
    v_readfirstlane_b32 s8, v{vT0}          ; wave
    v_lshlrev_b32 v{vOFF}, 4, v{vOFF}
    s_and_b32 s9, s2, 7
    s_lshr_b32 s10, s2, 3
    s_lshl_b32 s9, s9, 2
    s_and_b32 s11, s10, 3
    s_add_u32 s9, s9, s11                   ; head
    s_lshr_b32 s10, s10, 2                  ; qblock
    s_lshl_b32 s12, s9, 16                  ; head*64K
    s_lshl_b32 s13, s8, 10                  ; wave*1K
    s_add_u32 s12, s12, s13
    s_lshl_b32 s14, s10, 13                 ; qblock*8K
    s_add_u32 s15, s12, s14
    s_mov_b32 s6, {WS_BYTES}
    s_mov_b32 s7, 0x20000
    s_waitcnt lgkmcnt(0)
    buffer_load_dwordx4 {vr(vQ,4)}, v{vOFF}, s[4:7], s15 offen
    """)
    for c in range(8):
        a(f"""
        s_add_u32 s16, s12, s14
        s_add_u32 s17, s16, {WS_VF}
        s_add_u32 s16, s16, {WS_KF}
        s_add_u32 m0, s13, {LDS_K + c*8192}
        s_add_u32 s14, s14, 0x2000
        buffer_load_dwordx4 v{vOFF}, s[4:7], s16 offen lds
        s_add_u32 m0, s13, {LDS_V + c*8192}
        s_and_b32 s14, s14, 0xffff
        buffer_load_dwordx4 v{vOFF}, s[4:7], s17 offen lds
        """)
    a.c("ones region")
    a(f"""
    v_mov_b32 v{vS[0]}, 0x3f803f80
    v_mov_b32 v{vS[0]+1}, 0x3f803f80
    v_mov_b32 v{vS[0]+2}, 0x3f803f80
    v_mov_b32 v{vS[0]+3}, 0x3f803f80
    """)
    if EXPT.get("fewones"):
        a(f"""
        v_and_b32 v{vT0}, 11, v0
        v_cmp_eq_u32 vcc, 0, v{vT0}
        s_nop 1
        v_cndmask_b32 v{vS[0]}, 0, v{vS[0]}, vcc
        v_cndmask_b32 v{vS[0]+1}, 0, v{vS[0]+1}, vcc
        v_cndmask_b32 v{vS[0]+2}, 0, v{vS[0]+2}, vcc
        v_cndmask_b32 v{vS[0]+3}, 0, v{vS[0]+3}, vcc
        """)
    a(f"""
    v_lshlrev_b32 v{vT0}, 4, v0
    v_add_u32 v{vT0}, {LDS_ONES}, v{vT0}
    ds_write_b128 v{vT0}, {vr(vS[0],4)}
    ds_write_b128 v{vT0}, {vr(vS[0],4)} offset:2048
    v_mov_b32 v{vIDX}, 0xdddd
    """)
    addr_setup(a)
    a("s_waitcnt vmcnt(14) lgkmcnt(0)\ns_barrier")
    if stamps: a("s_memtime s[64:65]\ns_memrealtime s[70:71]")
    attention_core(a, P, variant)
    a(f"""
    s_lshl_b32 s16, s10, 3
    s_add_u32 s16, s16, s8                  ; qtile
    s_lshl_b32 s16, s16, 5
    s_add_u32 s16, s16, s9
    s_lshl_b32 s16, s16, 10
    s_add_u32 s16, s16, {WS_OF}
    buffer_store_dwordx4 {vr(vO,4)}, v{vOFF}, s[4:7], s16 offen
    """)
    if stamps:
        a(f"""
        s_memtime s[66:67]
        s_waitcnt vmcnt(0)
        s_memrealtime s[68:69]
        s_waitcnt lgkmcnt(0)
        s_sub_u32 s64, s64, s62
        s_sub_u32 s66, s66, s62
        v_mov_b32 v8, s60
        v_mov_b32 v9, s68
        v_mov_b32 v10, s64
        v_mov_b32 v11, s66
        s_lshl_b32 s16, s2, 3
        s_add_u32 s16, s16, s8
        s_lshl_b32 s16, s16, 4
        s_add_u32 s16, s16, {WS_STAMP}
        v_mov_b32 v12, 0
        buffer_store_dwordx4 v[8:11], v12, s[4:7], s16 offen
        v_mov_b32 v13, s70
        s_add_u32 s16, s16, 0x10000
        buffer_store_dword v13, v12, s[4:7], s16 offen
        """)
    a(f"{P}_end:\ns_endpgm")
    return kernel_header(name) + a.text() + kernel_desc(name, ATT_VGPR)
```

```python
from asmlib import *
import struct, math
def f32bits(x): return struct.unpack("<I", struct.pack("<f", x))[0]

G_PS = 136 * 16
G_CS = 2 * G_PS
G_SS = 16 * G_CS
G_TS = 16 * G_SS
K1_LDS = 131072
LX, LW = 0, 65536
QSCALE = 0.25 * math.log2(math.e)
VSCALE = 1.0

sWAVE, sXCD, sI, sJ, sROT = 8, 9, 10, 11, 12
sX, sW, sWS = 16, 20, 24
K1_VGPR = 144

def gemm_loop(a, P, mode):
    vXA, vWA, F0, ACC = 4, 8, 16, 64
    if mode == 'f':
        nx, setsz = 4, 20
    else:
        nx, setsz = 2, 16
    def reads(slot, ks, st):
        base = F0 + st * setsz
        r = []
        if mode == 'f':
            r.append(f"ds_read_b128 {vr(base+16,4)}, v{vWA+ks} offset:{slot*16384}")
            for t in range(4): r.append(f"ds_read_b128 {vr(base+4*t,4)}, v{vXA+ks} offset:{slot*16384+t*4096}")
        else:
            r.append(f"ds_read_b128 {vr(base,4)}, v{vXA+ks} offset:{slot*16384}")
            for z in range(2): r.append(f"ds_read_b64_tr_b16 {vr(base+8+2*z,2)}, v{vWA} offset:{slot*16384+ks*4096+z*1024}")
            for z in range(2): r.append(f"ds_read_b64_tr_b16 {vr(base+12+2*z,2)}, v{vWA+1} offset:{slot*16384+ks*4096+z*1024}")
            r.append(f"ds_read_b128 {vr(base+4,4)}, v{vXA+ks} offset:{slot*16384+4096}")
        return r
    def mfmas(st, first):
        base = F0 + st * setsz
        m = []
        if mode == 'f':
            for t in range(4):
                c = "0" if first else vr(ACC+16*t,16)
                m.append(f"v_mfma_f32_32x32x16_bf16 {vr(ACC+16*t,16)}, {vr(base+4*t,4)}, {vr(base+16,4)}, {c}")
        else:
            for (x, w) in ((0,0),(0,1),(1,0),(1,1)):
                t = 2*x + w
                c = "0" if first else vr(ACC+16*t,16)
                X, W = vr(base+4*x,4), vr(base+8+4*w,4)
                A, B = (W, X) if mode == 'qk' else (X, W)
                m.append(f"v_mfma_f32_32x32x16_bf16 {vr(ACC+16*t,16)}, {A}, {B}, {c}")
        return m
    a("s_barrier")
    for r in reads(0, 0, 0): a(r)
    steps = [(c, ks) for c in range(8) for ks in range(4)]
    for n, (c, ks) in enumerate(steps):
        st = n & 1
        a("s_waitcnt lgkmcnt(0)")
        nxt = steps[n+1] if n + 1 < len(steps) else None
        if nxt and nxt[1] == 0: a("s_barrier")
        rd = reads(nxt[0] & 3, nxt[1], st ^ 1) if nxt else []
        m = mfmas(st, n == 0)
        split = [3, 3, 0, 0] if len(rd) == 6 else [2, 2, 1, 0]
        for i in range(4):
            a(m[i])
            for _ in range(split[i]):
                if rd: a(rd.pop(0))

def lane_consts(a):
    a("""
    v_and_b32 v1, 63, v0
    v_and_b32 v2, 31, v0
    v_bfe_u32 v3, v0, 5, 1
    """)

def xaddr(a, dst, rowreg, base, tmp):
    a(f"""
    v_bfe_u32 v{tmp}, v{rowreg}, 1, 3
    v_xor_b32 v{tmp}, v{tmp}, v3
    v_lshlrev_b32 v{tmp}, 4, v{tmp}
    v_lshl_add_u32 v{dst}, v{rowreg}, 7, v{tmp}
    """)
    if base: a(f"v_add_u32 v{dst}, {base}, v{dst}")
    for ks in range(1, 4): a(f"v_xor_b32 v{dst+ks}, {ks*32}, v{dst}")

def phase1(a, P, store_flags=""):
    a(f"""
    s_load_dwordx2 s[{sWS}:{sWS+1}], s[0:1], {KA_WS}
    v_lshrrev_b32 v1, 6, v0
    s_and_b32 s{sXCD}, s2, 7
    v_readfirstlane_b32 s{sWAVE}, v1
    s_lshr_b32 s3, s2, 3
    s_and_b32 s{sI}, s3, 7
    s_lshr_b32 s{sJ}, s3, 3
    s_lshl_b32 s{sROT}, s{sJ}, 1
    s_add_u32 s{sROT}, s{sROT}, s{sI}
    s_and_b32 s{sROT}, s{sROT}, 7
    s_and_b32 s3, s{sXCD}, 1
    s_lshl_b32 s3, s3, 3
    s_add_u32 s{sI}, s{sI}, s3
    s_lshr_b32 s{sXCD}, s{sXCD}, 1
    s_mov_b32 s{sWS+2}, {WS_BYTES}
    s_mov_b32 s{sWS+3}, 0x20000
    s_mov_b32 s{sX+2}, 0x200000
    s_mov_b32 s{sX+3}, 0x20000
    s_mov_b32 s{sW+3}, 0x20000
    """)
    lane_consts(a)
    a(f"""
    s_cmp_lt_u32 s{sWAVE}, 4
    s_cbranch_scc1 {P}_comp
    """)
    sLW, sXO, sWO, sXQ, sWQ, sWC, sM, sCH = 13, 28, 29, 30, 31, 32, 33, 34
    a(f"""
    s_sub_u32 s{sLW}, s{sWAVE}, 4
    v_lshrrev_b32 v4, 3, v1
    v_and_b32 v5, 7, v1
    v_lshrrev_b32 v6, 4, v1
    v_xor_b32 v5, v5, v6
    v_lshlrev_b32 v5, 4, v5
    s_mov_b64 s[36:37], -1
    s_cmp_eq_u32 s{sXCD}, 3
    s_cbranch_scc1 {P}_ldf
    s_load_dwordx2 s[{sX}:{sX+1}], s[0:1], {KA_BX}
    s_load_dwordx2 s[{sW}:{sW+1}], s[0:1], {KA_WQKV}
    s_mov_b32 s{sW+2}, {512*3072}
    v_lshl_add_u32 v8, v4, 10, v5
    v_xor_b32 v9, 64, v8
    v_and_b32 v7, 15, v1
    v_lshlrev_b32 v10, 2, v6
    v_xor_b32 v7, v7, v10
    v_lshlrev_b32 v7, 4, v7
    v_mul_u32_u24 v10, 3072, v6
    v_add_u32 v10, v10, v7
    v_mov_b32 v11, v10
    s_lshl_b32 s{sXO}, s{sI}, 17
    s_lshl_b32 s3, s{sLW}, 15
    s_add_u32 s{sXO}, s{sXO}, s3
    s_movk_i32 s{sXQ}, 0x2000
    s_lshl_b32 s{sWO}, s{sXCD}, 2
    s_add_u32 s{sWO}, s{sWO}, s{sJ}
    s_lshl_b32 s{sWO}, s{sWO}, 8
    s_mul_i32 s3, s{sLW}, {16*3072}
    s_add_u32 s{sWO}, s{sWO}, s3
    s_movk_i32 s{sWQ}, {4*3072}
    s_mov_b32 s{sWC}, {64*3072}
    s_branch {P}_ldgo
    {P}_ldf:
    s_load_dwordx2 s[{sX}:{sX+1}], s[0:1], {KA_AX}
    s_lshr_b32 s3, s{sJ}, 1
    s_lshl_b32 s3, s3, 3
    s_add_u32 s3, s3, {KA_HRE}
    s_load_dwordx2 s[{sW}:{sW+1}], s[0:1], s3
    s_mov_b32 s{sW+2}, {512*1024}
    v_lshl_add_u32 v8, v4, 16, v5
    v_xor_b32 v9, 64, v8
    v_lshl_add_u32 v10, v4, 11, v5
    v_xor_b32 v11, 64, v10
    s_lshl_b32 s{sXO}, s{sI}, 2
    s_add_u32 s{sXO}, s{sXO}, s{sLW}
    s_lshl_b32 s{sXO}, s{sXO}, 10
    s_mov_b32 s{sXQ}, 0x80000
    s_and_b32 s{sWO}, s{sJ}, 1
    s_lshl_b32 s{sWO}, s{sWO}, 10
    s_lshl_b32 s3, s{sLW}, 16
    s_add_u32 s{sWO}, s{sWO}, s3
    s_movk_i32 s{sWQ}, 0x4000
    s_movk_i32 s{sWC}, 128
    s_lshl_b32 s3, s{sLW}, 4
    s_add_u32 s3, s3, s{sJ}
    s_cmp_eq_u32 s3, 2
    s_cbranch_scc0 {P}_ldgo
    s_mov_b32 s36, 0xffffff00
    v_mov_b32 v12, 0xbf803f80
    v_lshlrev_b32 v13, 2, v2
    v_lshl_add_u32 v13, v3, 14, v13
    v_add_u32 v13, {LW}, v13
    ds_write_b32 v13, v12
    ds_write_b32 v13, v12 offset:32768
    {P}_ldgo:
    s_lshl_b32 s{sM}, s{sLW}, 12
    s_mov_b32 s{sCH}, s{sROT}
    s_waitcnt lgkmcnt(0)
    """)
    def issue(n):
        slot = n & 3
        a(f"""
        s_lshl_b32 s38, s{sCH}, 7
        s_add_u32 s38, s38, s{sXO}
        s_mul_i32 s39, s{sCH}, s{sWC}
        s_add_u32 s39, s39, s{sWO}
        s_add_u32 s{sCH}, s{sCH}, 1
        s_and_b32 s{sCH}, s{sCH}, 7
        """)
        for q in range(4):
            a(f"s_add_u32 m0, s{sM}, {LX + slot*16384 + q*1024}")
            a("s_nop 0" if q == 0 else f"s_add_u32 s39, s39, s{sWQ}")
            a(f"buffer_load_dwordx4 v{8 + (q&1)}, s[{sX}:{sX+3}], s38 offen lds")
            a(f"s_add_u32 m0, s{sM}, {LW + slot*16384 + q*1024}")
            a(f"s_add_u32 s38, s38, s{sXQ}")
            if q == 0: a("s_mov_b64 exec, s[36:37]")
            a(f"buffer_load_dwordx4 v{10 + (q&1)}, s[{sW}:{sW+3}], s39 offen lds")
            if q == 0: a("s_mov_b64 exec, -1")
    issue(0); issue(1)
    for c in range(8):
        a(f"s_waitcnt vmcnt({8 if c < 7 else 0})")
        a("s_barrier")
        if c + 2 < 8: issue(c + 2)
    a.c("twiddle fragments for FNet phase 2")
    a(f"""
    s_lshl_b32 s3, s2, 1
    s_lshr_b32 s38, s{sLW}, 1
    s_add_u32 s3, s3, s38
    s_and_b32 s38, s3, 7                    ; kk
    s_lshr_b32 s39, s3, 4                   ; r'
    s_bfe_u32 s40, s3, 0x10003              ; mt
    s_and_b32 s41, s{sLW}, 1                ; type
    s_lshl_b32 s42, s40, 10
    s_add_u32 s42, s42, s39
    v_lshl_add_u32 v4, v2, 5, s42           ; t
    s_lshl_b32 s42, s38, 3
    v_lshl_add_u32 v5, v3, 2, s42           ; s2 base
    v_mul_u32_u24 v6, v4, v5
    s_lshl_b32 s42, s41, 9
    v_subrev_u32 v6, s42, v6
    s_mov_b32 s43, 1.0                      ; p
    s_mov_b32 s44, 0                        ; q
    s_mov_b32 s45, -1.0                     ; -sigma
    s_cmp_gt_u32 s39, 16
    s_cselect_b32 s45, 1.0, s45
    s_and_b32 s46, s39, 15
    s_cselect_b32 s45, s45, 0
    s_cmp_eq_u32 s39, 16
    s_cselect_b32 s43, 0, s43
    s_cselect_b32 s44, 1.0, s44
    """)
    for T in range(4):
        a(f"""
        v_and_b32 v7, 0x7ff, v6
        v_cvt_f32_u32 v7, v7
        v_mul_f32 v7, {hex(f32bits(1/2048))}, v7
        v_cos_f32 v8, v7
        v_sin_f32 v9, v7
        v_add_u32 v6, v6, v4
        v_mul_f32 v9, s45, v9
        v_fmac_f32 v9, s44, v8
        v_mul_f32 v8, s43, v8
        v_cvt_pk_bf16_f32 v{12+T}, v8, v9
        """)
    a(f"""
    s_lshr_b32 s42, s3, 3                   ; r'*2+mt
    s_lshl_b32 s42, s42, 4
    s_lshl_b32 s41, s41, 3
    s_add_u32 s42, s42, s41
    s_add_u32 s42, s42, s38
    s_lshl_b32 s42, s42, 10
    s_add_u32 s42, s42, {WS_TW}
    v_lshlrev_b32 v4, 4, v1
    buffer_store_dwordx4 v[12:15], v4, s[{sWS}:{sWS+3}], s42 offen {store_flags}
    s_branch {P}_p1done
    """)
    a(f"""
    {P}_comp:
    s_cmp_eq_u32 s{sXCD}, 3
    s_cbranch_scc1 {P}_cf
    s_and_b32 s28, s{sWAVE}, 1              ; wm
    s_lshr_b32 s29, s{sWAVE}, 1             ; wn
    """)
    a.c("W (tr) addresses")
    a(f"""
    v_bfe_u32 v12, v1, 2, 2                 ; r
    s_lshl_b32 s3, s29, 1
    v_xor_b32 v13, s3, v12
    v_lshlrev_b32 v13, 6, v13
    v_lshl_add_u32 v13, v12, 8, v13         ; r*256 + blk*64
    v_lshl_add_u32 v13, v3, 11, v13         ; + 8h rows
    v_bfe_u32 v14, v1, 4, 1
    v_lshl_add_u32 v13, v14, 5, v13
    v_and_b32 v14, 3, v1
    v_lshl_add_u32 v13, v14, 3, v13
    v_add_u32 v8, {LW}, v13
    v_xor_b32 v9, 64, v8
    s_lshl_b32 s3, s28, 6
    s_lshl_b32 s30, s{sJ}, 3
    s_lshl_b32 s31, s29, 2
    s_add_u32 s30, s30, s31
    s_lshl_b32 s30, s30, 16
    s_lshl_b32 s31, s{sI}, 2
    s_lshl_b32 s32, s28, 1
    s_add_u32 s31, s31, s32
    s_lshl_b32 s31, s31, 10
    s_add_u32 s30, s30, s31
    s_lshl_b32 s31, s{sXCD}, 21
    s_add_u32 s30, s30, s31
    s_cmp_eq_u32 s{sXCD}, 2
    s_cbranch_scc1 {P}_cv
    v_add_u32 v12, s3, v2
    """)
    xaddr(a, 4, 12, LX, 13)
    a(f"""
    v_lshlrev_b32 v10, 4, v1
    s_mov_b32 s31, 0x10000                  ; z stride
    s_cmp_eq_u32 s{sXCD}, 0
    s_cselect_b32 s32, {hex(f32bits(QSCALE))}, 1.0
    """)
    gemm_loop(a, P, 'qk')
    a(f"""
    s_branch {P}_epi
    {P}_cv:
    v_and_b32 v12, 0x13, v2
    v_bfe_u32 v13, v2, 2, 1
    v_lshl_add_u32 v12, v13, 3, v12
    v_bfe_u32 v13, v2, 3, 1
    v_lshl_add_u32 v12, v13, 2, v12
    v_add_u32 v12, s3, v12
    """)
    xaddr(a, 4, 12, LX, 13)
    a(f"""
    v_and_b32 v10, 15, v1
    v_lshlrev_b32 v10, 4, v10
    v_lshl_add_u32 v10, v3, 8, v10
    v_bfe_u32 v13, v1, 4, 1
    v_lshl_add_u32 v10, v13, 16, v10
    s_movk_i32 s31, 512
    s_mov_b32 s32, {hex(f32bits(VSCALE))}
    """)
    gemm_loop(a, P, 'v')
    a(f"{P}_epi:\ns_mov_b32 s33, s32\ns_nop 7")
    for x in range(2):
        for w in range(2):
            acc = 64 + 16 * (2*x + w)
            for z in range(2):
                d = 16 + 4 * ((2*w + z) & 3) + 16 * x
                for i in range(0, 8, 2): a(f"v_pk_mul_f32 {vr(acc+8*z+i,2)}, {vr(acc+8*z+i,2)}, s[32:33]")
                for i in range(4): a(f"v_cvt_pk_bf16_f32 v{d+i}, v{acc+8*z+2*i}, v{acc+8*z+2*i+1}")
                if z == 0: a(f"s_add_u32 s34, s30, {w*0x20000 + x*1024}")
                else: a(f"s_add_u32 s34, s34, s31")
                a(f"buffer_store_dwordx4 {vr(d,4)}, v10, s[{sWS}:{sWS+3}], s34 offen {store_flags}")
    a(f"s_branch {P}_p1done")
    a(f"{P}_cf:")
    xaddr(a, 4, 2, LX, 13)
    a(f"s_lshl_b32 s3, s{sWAVE}, 5\nv_add_u32 v12, s3, v2")
    xaddr(a, 8, 12, LW, 13)
    a.c("real DFT-32 matrix fragments in v[128:135]")
    a(f"""
    v_bfe_u32 v13, v2, 2, 1                 ; h'
    v_lshlrev_b32 v13, 3, v13
    v_lshrrev_b32 v14, 3, v2                ; j
    v_lshl_add_u32 v13, v14, 1, v13
    v_bfe_u32 v14, v2, 1, 1
    v_add_u32 v13, v13, v14                 ; slot
    v_and_b32 v14, 1, v2                    ; comp
    v_cmp_eq_u32 vcc, 1, v2
    v_cvt_f32_u32 v14, v14
    v_mul_f32 v14, 0xbe800000, v14          ; phase -0.25
    v_cndmask_b32 v13, v13, 16, vcc
    v_cndmask_b32 v14, v14, 0, vcc
    v_cvt_f32_u32 v13, v13
    v_mul_f32 v13, {hex(f32bits(1/32))}, v13
    v_cvt_f32_u32 v15, v3
    v_mul_f32 v15, 4.0, v15
    v_fma_f32 v14, v15, v13, v14
    """)
    for kk in range(2):
        for s in range(0, 8, 2):
            for u in range(2):
                s1 = 16*kk + 8*((s+u)//4) + (s+u) % 4
                a(f"s_mov_b32 s3, {hex(f32bits(float(s1)))}")
                a(f"v_fma_f32 v{136+u}, s3, v13, v14")
                a(f"v_cos_f32 v{136+u}, v{136+u}")
            a("s_nop 0")
            a(f"v_cvt_pk_bf16_f32 v{128+4*kk+s//2}, v136, v137")
    a(f"""
    v_lshlrev_b32 v14, 4, v12               ; idx*16
    s_mov_b32 s3, {8*G_SS}
    v_mad_u32_u24 v14, v3, s3, v14
    s_lshr_b32 s28, s{sJ}, 1
    s_mul_i32 s28, s28, {G_TS}
    v_add_u32 v14, s28, v14
    s_cmp_eq_u32 s{sJ}, 2
    s_cselect_b32 s28, 0, -1
    v_cmp_eq_u32 vcc, s28, v12
    v_subrev_u32 v15, {G_TS - 128*16}, v14
    s_and_b32 s30, s{sJ}, 1
    v_cndmask_b32 v140, v14, v15, vcc
    s_mul_i32 s30, s30, {G_PS}
    s_mul_i32 s31, s{sI}, {G_CS}
    s_add_u32 s30, s30, s31
    s_add_u32 s30, s30, {WS_G}
    """)
    gemm_loop(a, P, 'f')
    a("s_nop 9")
    for T in range(4):
        for i in range(8): a(f"v_cvt_pk_bf16_f32 v{16+8*T+i}, v{64+16*T+2*i}, v{64+16*T+2*i+1}")
    a("s_nop 1")
    for T in range(4): a(f"v_mfma_f32_32x32x16_bf16 {vr(64+16*T,16)}, v[128:131], {vr(16+8*T,4)}, 0")
    for T in range(4): a(f"v_mfma_f32_32x32x16_bf16 {vr(64+16*T,16)}, v[132:135], {vr(20+8*T,4)}, {vr(64+16*T,16)}")
    a("s_nop 11")
    for i in range(8):
        for T in range(4): a(f"v_cvt_pk_bf16_f32 v{16+4*i+T}, v{64+16*T+2*i}, v{64+16*T+2*i+1}")
        a(f"buffer_store_dwordx4 {vr(16+4*i,4)}, v140, s[{sWS}:{sWS+3}], s30 offen {store_flags}")
        if i < 7: a(f"s_add_u32 s30, s30, {G_SS}")
    a(f"{P}_p1done:")

def gen_k1(name):
    a = Asm()
    a(f"s_cmp_ge_u32 s2, 256\ns_cbranch_scc1 {name}_end")
    phase1(a, name)
    a(f"{name}_end:\ns_endpgm")
    return kernel_header(name) + a.text() + kernel_desc(name, K1_VGPR)
```

```python
from asmlib import *
from k1 import G_PS, G_CS, G_SS, G_TS, f32bits, lane_consts
K3_LDS = 131072
K3_VGPR = 168
sWAVE = 8
sWS, sOUT, sWO = 16, 20, 24

def fnet2(a, P, sMT, sR, sJ, load_flags="", barriers=()):
    ACC, F0 = 16, 48
    a(f"""
    s_sub_u32 s40, 32, s{sR}
    s_min_u32 s40, s40, s{sR}
    s_and_b32 s40, s40, 15                  ; slot
    s_mul_i32 s40, s40, {G_SS}
    s_add_u32 s40, s40, {WS_G}
    s_lshl_b32 s41, s{sR}, 1
    s_add_u32 s41, s41, s{sMT}
    s_lshl_b32 s41, s41, 14
    s_add_u32 s41, s41, {WS_TW}
    s_lshl_b32 s42, s{sJ}, 5
    v_add_u32 v4, s42, v2                   ; 32J+n
    v_sub_u32 v5, 0x100, v4
    v_sub_u32 v6, 0xff, v4
    s_cmp_ge_u32 s{sJ}, 4
    s_cselect_b64 vcc, -1, 0
    s_cselect_b32 s44, -1.0, 1.0
    s_mov_b32 s45, s44
    v_cndmask_b32 v5, v4, v5, vcc
    v_cndmask_b32 v6, v4, v6, vcc
    v_and_b32 v7, 0x7f, v5
    v_cmp_eq_u32 vcc, 0, v7
    v_mul_u32_u24 v8, {G_CS}, v3
    v_lshl_add_u32 v5, v5, 4, v8
    v_lshl_add_u32 v6, v6, 4, v8
    v_add_u32 v6, {G_PS}, v6
    v_mov_b32 v8, 0x40000000
    v_cndmask_b32 v7, v5, v8, vcc
    v_lshlrev_b32 v4, 4, v1
    """)
    def loads(ks):
        ty, kk = (1, ks) if ks < 8 else (0, ks - 8)
        b = F0 + 12 * (ks & 7)
        a(f"s_add_u32 s42, s41, {(ty*8+kk)*1024}")
        a(f"s_add_u32 s43, s40, {ty*G_TS + 2*kk*G_CS}")
        a(f"buffer_load_dwordx4 {vr(b,4)}, v4, s[{sWS}:{sWS+3}], s42 offen {load_flags}")
        a(f"buffer_load_dwordx4 {vr(b+4,4)}, v{7 if ty else 5}, s[{sWS}:{sWS+3}], s43 offen {load_flags}")
        a(f"buffer_load_dwordx4 {vr(b+8,4)}, v6, s[{sWS}:{sWS+3}], s43 offen {load_flags}")
    for ks in range(8): loads(ks)
    for ks in range(16):
        b = F0 + 12 * (ks & 7)
        if ks in barriers: a("s_barrier")
        a(f"s_waitcnt vmcnt({21 if ks < 8 else 3*(15-ks)})")
        if ks == 8:
            a("s_nop 10")
            for i in range(0, 32, 2): a(f"v_pk_mul_f32 {vr(ACC+i,2)}, {vr(ACC+i,2)}, s[44:45]")
            a("s_nop 1")
        for p in range(2):
            c = "0" if ks == 0 else vr(ACC+16*p,16)
            a(f"v_mfma_f32_32x32x16_bf16 {vr(ACC+16*p,16)}, {vr(b,4)}, {vr(b+4+4*p,4)}, {c}")
        if ks < 8: loads(ks + 8)
    a(f"""
    v_lshlrev_b32 v4, 2, v2
    v_lshl_add_u32 v4, v3, 18, v4
    s_lshl_b32 s42, s{sMT}, 10
    s_add_u32 s42, s42, s{sR}
    s_lshl_b32 s42, s42, 11
    s_lshl_b32 s43, s{sJ}, 7
    s_add_u32 s42, s42, s43
    s_nop 6
    """)
    for r in range(16):
        a(f"v_cvt_pk_bf16_f32 v{F0+r}, v{ACC+r}, v{ACC+16+r}")
        a(f"s_add_u32 s43, s42, {(8*(r//4) + r%4) * 32 * 2048}")
        a(f"buffer_store_dword v{F0+r}, v4, s[{sOUT}:{sOUT+3}], s43 offen")

def gen_k3(name):
    a = Asm(); P = name
    a(f"""
    s_cmp_ge_u32 s2, 256
    s_cbranch_scc1 {P}_end
    s_load_dwordx2 s[{sWS}:{sWS+1}], s[0:1], {KA_WS}
    s_load_dwordx2 s[{sOUT}:{sOUT+1}], s[0:1], {KA_OUT}
    s_load_dwordx2 s[{sWO}:{sWO+1}], s[0:1], {KA_WO}
    v_lshrrev_b32 v1, 6, v0
    s_and_b32 s9, s2, 7
    v_readfirstlane_b32 s{sWAVE}, v1
    s_lshr_b32 s3, s2, 3
    s_and_b32 s10, s3, 3
    s_lshl_b32 s9, s9, 2
    s_add_u32 s9, s9, s10
    s_lshr_b32 s10, s3, 2
    s_mov_b32 s{sWS+2}, {WS_BYTES}
    s_mov_b32 s{sWS+3}, 0x20000
    s_mov_b32 s{sOUT+2}, 0x400000
    s_mov_b32 s{sOUT+3}, 0x20000
    s_mov_b32 s{sWO+2}, 0x80000
    s_mov_b32 s{sWO+3}, 0x20000
    """)
    lane_consts(a)
    a(f"""
    s_waitcnt lgkmcnt(0)
    s_cmp_lt_u32 s{sWAVE}, 4
    s_cbranch_scc1 {P}_op
    s_sub_u32 s11, s{sWAVE}, 4
    """)
    fnet2(a, P, 11, 9, 10, barriers=(0, 3, 6, 9))
    a(f"s_branch {P}_end")
    a(f"""
    {P}_op:
    v_lshlrev_b32 v4, 4, v1
    v_lshrrev_b32 v5, 3, v1
    v_bfe_u32 v6, v1, 4, 1                  ; (row>>1)&1
    v_lshlrev_b32 v6, 2, v6
    v_and_b32 v7, 7, v1
    v_xor_b32 v6, v6, v7
    v_lshlrev_b32 v6, 4, v6
    v_lshl_add_u32 v5, v5, 10, v6
    s_lshl_b32 s12, s9, 16
    s_add_u32 s12, s12, {WS_OF}
    s_lshl_b32 s13, s10, 7
    s_and_b32 s14, s10, 3
    """)
    def issue(n):
        a(f"""
        s_lshl_b32 s28, s14, 3
        s_lshl_b32 s29, s{sWAVE}, 1
        s_add_u32 s28, s28, s29
        s_lshl_b32 s29, s28, 14
        s_add_u32 s29, s29, s13
        s_lshl_b32 s28, s28, 10
        s_add_u32 s28, s28, s12                 ; O soffset
        s_lshl_b32 s30, s{sWAVE}, 12
        s_add_u32 s14, s14, 1
        s_and_b32 s14, s14, 3
        """)
        for q in range(4):
            hh, qt = q >> 1, q & 1
            a(f"s_add_u32 m0, s30, {n*16384 + q*1024}")
            a(f"s_add_u32 s31, s28, {hh*1024 + qt*32768}")
            a(f"buffer_load_dwordx4 v4, s[{sWS}:{sWS+3}], s31 offen lds")
            a(f"s_add_u32 m0, s30, {65536 + n*16384 + q*1024}")
            a(f"s_add_u32 s31, s29, {q*8192}")
            a(f"buffer_load_dwordx4 v5, s[{sWO}:{sWO+3}], s31 offen lds")
    issue(0); issue(1)
    a(f"""
    s_and_b32 s32, s{sWAVE}, 1              ; q tile
    s_lshr_b32 s33, s{sWAVE}, 1             ; n tile
    s_lshl_b32 s3, s32, 10
    v_add_u32 v8, s3, v4
    v_bfe_u32 v9, v1, 2, 2                  ; r
    v_lshrrev_b32 v10, 1, v9
    v_xor_b32 v10, s33, v10
    v_lshlrev_b32 v10, 6, v10
    v_lshl_add_u32 v10, v9, 7, v10
    v_lshl_add_u32 v10, v3, 9, v10          ; + 4h rows
    v_and_b32 v9, 1, v1
    v_lshl_add_u32 v10, v9, 5, v10          ; 16*(c&1) cols
    v_bfe_u32 v9, v1, 1, 1
    v_lshl_add_u32 v10, v9, 3, v10          ; 4*(c>>1) cols
    v_bfe_u32 v9, v1, 4, 1
    v_lshl_add_u32 v10, v9, 4, v10
    v_add_u32 v10, 65536, v10
    """)
    ACC, F0 = 16, 32
    for n in range(4):
        a(f"s_waitcnt vmcnt({8 if n < 3 else 0})")
        a("s_barrier")
        for k in range(8):
            b = F0 + 8*k
            a(f"ds_read_b128 {vr(b,4)}, v8 offset:{n*16384 + k*2048}")
            for z in range(2): a(f"ds_read_b64_tr_b16 {vr(b+4+2*z,2)}, v10 offset:{n*16384 + k*2048 + z*1024}")
            if k == 3 and n + 2 < 4: issue(n + 2)
            if k >= 4:
                kk = k - 4
                a("s_waitcnt lgkmcnt(12)")
                a(f"v_mfma_f32_32x32x16_bf16 {vr(ACC,16)}, {vr(F0+8*kk+4,4)}, {vr(F0+8*kk,4)}, {'0' if n == 0 and kk == 0 else vr(ACC,16)}")
        for kk in range(4, 8):
            a(f"s_waitcnt lgkmcnt({3*(7-kk)})")
            a(f"v_mfma_f32_32x32x16_bf16 {vr(ACC,16)}, {vr(F0+8*kk+4,4)}, {vr(F0+8*kk,4)}, {vr(ACC,16)}")
    a(f"""
    v_lshlrev_b32 v4, 11, v2
    v_lshl_add_u32 v4, v3, 5, v4
    s_lshl_b32 s28, s9, 1
    s_add_u32 s28, s28, s32
    s_lshl_b32 s28, s28, 16
    s_lshl_b32 s29, s33, 6
    s_add_u32 s28, s28, s29
    s_add_u32 s28, s28, s13
    s_add_u32 s28, s28, 1024
    s_nop 4
    """)
    for i in range(8): a(f"v_cvt_pk_bf16_f32 v{F0+i}, v{ACC+2*i}, v{ACC+2*i+1}")
    a(f"buffer_store_dwordx4 {vr(F0,4)}, v4, s[{sOUT}:{sOUT+3}], s28 offen")
    a(f"buffer_store_dwordx4 {vr(F0+4,4)}, v4, s[{sOUT}:{sOUT+3}], s28 offen offset:16")
    a(f"{P}_end:\ns_endpgm")
    return kernel_header(name) + a.text() + kernel_desc(name, K3_VGPR)
```

```python
import sys
from asmlib import *
import k1, attn, k3
NAME = "concat_heads__spectral_fnet__softmax_full_mha__prompt"
def header():
    ref = open(f"cdna_kernels/{NAME}.s.ref").read().split("\n")
    return "\n".join(l for l in ref if l.startswith(";") and "@launch" not in l and "Override" not in l and "grid=ceil" not in l) + "\n"
def gen(extra_empty=0):
    s = header()
    s += f"; @launch kernel=proj_kernel grid=(256,1,1) block=(512,1,1) lds={k1.K1_LDS}\n"
    s += f"; @launch kernel=attn_kernel grid=(256,1,1) block=(512,1,1) lds={attn.ATT_LDS}\n"
    for i in range(extra_empty): s += "; @launch kernel=empty_kernel grid=(256,1,1) block=(64,1,1) lds=0\n"
    s += f"; @launch kernel=outp_kernel grid=(256,1,1) block=(384,1,1) lds={k3.K3_LDS}\n"
    s += '.amdgcn_target "amdgcn-amd-amdhsa--gfx950"\n'
    s += k1.gen_k1("proj_kernel") + attn.gen_attn_kernel("attn_kernel", 6) + k3.gen_k3("outp_kernel")
    if extra_empty: s += kernel_header("empty_kernel") + "s_endpgm\n" + kernel_desc("empty_kernel", 8)
    return s
if __name__ == "__main__":
    open(f"cdna_kernels/{NAME}.s", "w").write(gen())
    open(f"v3_e2.s", "w").write(gen(2))
```

```python
class Asm:
    def __init__(self):
        self.lines = []
    def __call__(self, s=""):
        for l in s.split("\n"):
            l = l.strip()
            if not l: continue
            if l.endswith(":") or l.startswith("."):
                self.lines.append(l)
            else:
                self.lines.append("    " + l)
    def c(self, s):
        self.lines.append("    ; " + s)
    def text(self):
        return "\n".join(self.lines) + "\n"

def vr(a, n):
    return f"v[{a}:{a+n-1}]" if n > 1 else f"v{a}"
def sr(a, n):
    return f"s[{a}:{a+n-1}]" if n > 1 else f"s{a}"

def kernel_header(name):
    return f""".text
.globl {name}
.p2align 8
.type {name},@function
{name}:
"""
def kernel_desc(name, vgpr, sgpr=96, accum=None):
    if accum is None: accum = (vgpr + 3) // 4 * 4
    return f""".section .rodata,"a"
.p2align 6
.amdhsa_kernel {name}
  .amdhsa_next_free_vgpr {vgpr}
  .amdhsa_next_free_sgpr {sgpr}
  .amdhsa_accum_offset {accum}
  .amdhsa_group_segment_fixed_size 0
  .amdhsa_kernarg_size 88
  .amdhsa_user_sgpr_count 2
  .amdhsa_user_sgpr_kernarg_segment_ptr 1
  .amdhsa_system_sgpr_workgroup_id_x 1
  .amdhsa_float_denorm_mode_32 3
.end_amdhsa_kernel
"""
KA_AX, KA_SRE, KA_SIM, KA_HRE, KA_HIM, KA_BX, KA_WQKV, KA_WO, KA_OUT, KA_DBG, KA_WS = [8*i for i in range(11)]
WS_QF = 0x000000
WS_KF = 0x200000
WS_VF = 0x400000
WS_OF = 0x600000
WS_G  = 0x800000
WS_TW = 0xC00000
WS_WOF = 0xC00000
WS_F1 = 0xD00000
WS_F2 = 0xD40000
WS_STAMP = 0xE00000
WS_BYTES = 0x1000000

STAMPS = False
STAMP_INS = 's_memrealtime'
NST = 16
def stamp(a, i):
    if STAMPS: a(f"{STAMP_INS} s[74:75]\ns_waitcnt lgkmcnt(0)\ns_mov_b32 s{76+i}, s74")
def stamp_init(a):
    if STAMPS:
        stamp(a, 0)
        for i in range(1, NST): a(f"s_mov_b32 s{76+i}, 0")
def stamp_flush(a, kid):
    if not STAMPS: return
    a("s_waitcnt vmcnt(0)")
    stamp(a, NST - 1)
    a(f"""
    s_load_dwordx2 s[92:93], s[0:1], {KA_WS}
    v_lshrrev_b32 v1, 6, v0
    s_mov_b32 s94, {WS_BYTES}
    s_mov_b32 s95, 0x20000
    v_readfirstlane_b32 s3, v1
    s_lshl_b32 s4, s2, 3
    s_add_u32 s4, s4, s3
    s_lshl_b32 s4, s4, 6
    s_add_u32 s4, s4, {WS_STAMP + kid * 0x20000}
    s_waitcnt lgkmcnt(0)
    """)
    for i in range(NST): a(f"v_mov_b32 v{8+i}, s{76+i}")
    a("v_mov_b32 v1, 0")
    for i in range(4): a(f"buffer_store_dwordx4 v[{8+4*i}:{11+4*i}], v1, s[92:95], s4 offen offset:{16*i}")
```

```python
from asmlib import *

LDS_K, LDS_V, LDS_ONES = 0, 65536, 131072
ATT_LDS = 131072 + 10240
vKA, vVA, vIDX, vVST, vT0, vT1, vOFF = 1, 2, 3, 4, 5, 6, 7
vQ, vK, vV0, vV1 = 8, 12, 16, 20
vS = (24, 40)
vC, vO = 56, 72
ATT_VGPR = 88
SHIFT = 40.0
EXPT = {}

def tile(a, t, variant=0):
    cur, nxt = vS[t & 1], vS[(t + 1) & 1]
    e = lambda i: a(f"v_exp_f32 v{cur+i}, v{cur+i}") if not EXPT.get("noexp") else a("s_nop 1")
    if EXPT.get("noqk"): e = lambda i: a(f"v_exp_f32 v{vS[1]+i}, v{vS[0]+(i*7+t)%16}")
    pq, p0 = {0: (4, 10), 1: (6, 11), 2: (5, 10), 3: (3, 10)}[variant & 3]
    onewait = variant & 4
    e(0); e(1)
    a("s_waitcnt lgkmcnt(0)" if onewait else "s_waitcnt lgkmcnt(2)")
    if not EXPT.get("nopv"): a(f"v_smfmac_f32_{'16x16x64' if EXPT.get('s16') else '32x32x32'}_bf16 {vr(vO,4 if EXPT.get('s16') else 16)}, {vr(vV1,4)}, {vr(nxt+8,8)}, v{vIDX}")
    if EXPT.get("maskv"): a("s_mov_b64 exec, s[36:37]")
    if not EXPT.get("nopv") and not (EXPT.get("halfds") and t & 1) and not EXPT.get("nods"): a(f"ds_read_b128 {vr(vV1,4)}, v{vVA} offset:{t*1024+512}")
    if EXPT.get("maskv"): a("s_mov_b64 exec, -1")
    for i in range(2, pq): e(i)
    if not onewait: a("s_waitcnt lgkmcnt(2)")
    if not EXPT.get("noqk"): a(f"v_mfma_f32_32x32x16_bf16 {vr(nxt,16)}, {vr(vK,4)}, {vr(vQ,4)}, {vr(vC,16) if not EXPT.get('c0') else 0}")
    if not (EXPT.get("halfds") and t & 1) and not EXPT.get("nods") and not EXPT.get("noqk"): a(f"ds_read_b128 {vr(vK,4)}, v{vKA} offset:{(t+2)*1024}")
    for i in range(pq, p0): e(i)
    if not onewait: a("s_waitcnt lgkmcnt(2)")
    if not EXPT.get("nopv"): a(f"v_smfmac_f32_{'16x16x64' if EXPT.get('s16') else '32x32x32'}_bf16 {vr(vO,4 if EXPT.get('s16') else 16)}, {vr(vV0,4)}, {vr(cur,8)}, v{vIDX}")
    if EXPT.get("maskv"): a("s_mov_b64 exec, s[36:37]")
    if not EXPT.get("nopv") and not (EXPT.get("halfds") and t & 1) and not EXPT.get("nods"): a(f"ds_read_b128 {vr(vV0,4)}, v{vVA} offset:{(t+1)*1024}")
    if EXPT.get("maskv"): a("s_mov_b64 exec, -1")
    for i in range(p0, 16): e(i)

def iteration(a, variant, sync=None):
    for t in range(8):
        if t == 6 and sync is not None:
            a(f"s_waitcnt vmcnt({sync})")
            a("s_barrier")
        tile(a, t, variant)
    a(f"v_add_u32 v{vKA}, 0x2000, v{vKA}")
    a(f"v_add_u32 v{vVA}, v{vVST}, v{vVA}")

def addr_setup(a):
    a(f"""
    v_mov_b32 v{vKA}, v{vOFF}
    v_and_b32 v{vT0}, 0xf0, v{vOFF}          ; d*16
    v_lshrrev_b32 v{vT1}, 1, v{vOFF}
    v_and_b32 v{vT1}, 0x100, v{vT1}          ; ha*256
    v_or_b32 v{vT0}, v{vT0}, v{vT1}
    v_and_b32 v{vT1}, 0x100, v{vOFF}         ; m>=16 -> 256
    v_lshlrev_b32 v{vT1}, 8, v{vT1}
    v_add_u32 v{vT0}, v{vT0}, v{vT1}
    v_add_u32 v{vVA}, {LDS_V}, v{vT0}
    v_lshrrev_b32 v{vT1}, 3, v{vT1}
    v_sub_u32 v{vVST}, 0x2000, v{vT1}
    """)

def prime(a):
    a(f"ds_read_b128 {vr(vK,4)}, v{vKA}")
    for i in range(16): a(f"v_mov_b32 v{vO+i}, 0")
    for i in range(8): a(f"v_mov_b32 v{vS[1]+8+i}, 0")
    for i in range(4): a(f"v_mov_b32 v{vV1+i}, 0")
    a("s_waitcnt lgkmcnt(0)")
    a(f"v_mfma_f32_32x32x16_bf16 {vr(vS[0],16)}, {vr(vK,4)}, {vr(vQ,4)}, {vr(vC,16)}")
    a(f"ds_read_b128 {vr(vK,4)}, v{vKA} offset:1024")
    a(f"ds_read_b128 {vr(vV0,4)}, v{vVA}")
    a("s_nop 11")

def max16(a, dst, src, first):
    if first:
        a(f"v_max3_f32 v{dst}, v{src}, v{src+1}, v{src+2}")
        for i in range(3, 15, 2): a(f"v_max3_f32 v{dst}, v{dst}, v{src+i}, v{src+i+1}")
        a(f"v_max_f32 v{dst}, v{dst}, v{src+15}")
    else:
        for i in range(0, 16, 2): a(f"v_max3_f32 v{dst}, v{dst}, v{src+i}, v{src+i+1}")

def set_c(a, shift):
    a(f"""
    v_mov_b32 v{vT1}, v{vT0}
    s_nop 1
    v_permlane32_swap_b32 v{vT0}, v{vT1}
    s_nop 1
    v_max_f32 v{vT0}, v{vT0}, v{vT1}
    """)
    import struct
    bits = struct.unpack("<I", struct.pack("<f", -shift))[0]
    a(f"v_sub_f32 v{vC}, 0x{bits:08x}, v{vT0}")
    a(f"v_mov_b32 v{vC+1}, v{vC}")
    for i in range(2, 16, 2): a(f"v_mov_b64 {vr(vC+i,2)}, {vr(vC,2)}")

def attention_core(a, P, variant=0, sCNT=30, sFLAG=31, s0sync=12):
    a(f"""
    ds_read_b128 {vr(vK,4)}, v{vKA}
    ds_read_b128 {vr(vV0,4)}, v{vKA} offset:1024
    s_mov_b32 s{sFLAG}, {1 if EXPT else 0}
    s_mov_b32 s36, 0xffff
    s_mov_b32 s37, 0xffff
    s_waitcnt lgkmcnt(1)
    v_mfma_f32_32x32x16_bf16 {vr(vS[0],16)}, {vr(vK,4)}, {vr(vQ,4)}, 0
    s_waitcnt lgkmcnt(0)
    v_mfma_f32_32x32x16_bf16 {vr(vS[1],16)}, {vr(vV0,4)}, {vr(vQ,4)}, 0
    s_nop 10
    """)
    max16(a, vT0, vS[0], True)
    max16(a, vT0, vS[1], False)
    set_c(a, EXPT.get('shift', SHIFT))
    prime(a)
    iteration(a, variant, sync=s0sync)
    iteration(a, variant, sync=0)
    a(f"s_movk_i32 s{sCNT}, 6")
    a(".p2align 6")
    a(f"{P}_loop:")
    iteration(a, variant)
    a(f"""
    s_sub_u32 s{sCNT}, s{sCNT}, 1
    s_cmp_lg_u32 s{sCNT}, 0
    s_cbranch_scc1 {P}_loop
    s_waitcnt lgkmcnt(0)
    v_smfmac_f32_32x32x32_bf16 {vr(vO,16)}, {vr(vV1,4)}, {vr(vS[1]+8,8)}, v{vIDX}
    s_cmp_lg_u32 s{sFLAG}, 0
    s_cbranch_scc1 {P}_fin
    s_nop 11
    """)
    a.c("safety check of the max stand-in: row sum below 2^100 and all accumulators finite")
    a(f"""
    v_add_f32 v{vT0}, abs(v{vO}), abs(v{vO+1})
    v_add_f32 v{vT0}, v{vT0}, abs(v{vO+2})
    v_add_f32 v{vT0}, v{vT0}, abs(v{vO+3})
    v_add_f32 v{vT0}, v{vT0}, abs(v{vO+4})
    v_add_f32 v{vT0}, v{vT0}, abs(v{vO+5})
    v_add_f32 v{vT0}, v{vT0}, abs(v{vO+6})
    v_add_f32 v{vT0}, v{vT0}, abs(v{vO+7})
    v_mov_b32 v{vT1}, 0x71800000
    v_cmp_nlt_f32 vcc, v{vO+8}, v{vT1}
    v_mov_b32 v{vT1}, 0x7f000000
    v_cmp_nlt_f32 s[32:33], v{vT0}, v{vT1}
    s_nop 1
    s_or_b64 vcc, vcc, s[32:33]
    s_cbranch_scc0 {P}_fin0
    """)
    a.c("fallback: true row max over all keys, then redo the pass")
    addr_setup(a)
    a(f"""
    v_mov_b32 v{vT0}, 0xff800000
    s_movk_i32 s{sCNT}, 64
    {P}_maxloop:
    ds_read_b128 {vr(vK,4)}, v{vKA}
    v_add_u32 v{vKA}, 0x400, v{vKA}
    s_waitcnt lgkmcnt(0)
    v_mfma_f32_32x32x16_bf16 {vr(vS[0],16)}, {vr(vK,4)}, {vr(vQ,4)}, 0
    s_nop 12
    """)
    max16(a, vT0, vS[0], False)
    a(f"""
    s_sub_u32 s{sCNT}, s{sCNT}, 1
    s_cmp_lg_u32 s{sCNT}, 0
    s_cbranch_scc1 {P}_maxloop
    """)
    set_c(a, 0.0)
    a(f"v_mov_b32 v{vKA}, v{vOFF}")
    prime(a)
    a(f"""
    s_mov_b32 s{sFLAG}, 1
    s_movk_i32 s{sCNT}, 8
    s_branch {P}_loop
    {P}_fin:
    s_nop 11
    {P}_fin0:
    v_rcp_f32 v{vT0}, v{vO+8}
    s_nop 0
    """)
    for i in range(8): a(f"v_mul_f32 v{vO+i}, v{vO+i}, v{vT0}")
    for i in range(4): a(f"v_cvt_pk_bf16_f32 v{vO+i}, v{vO+2*i}, v{vO+2*i+1}")

def gen_attn_kernel(name, variant=0):
    a = Asm()
    P = name
    a(f"""
    s_cmp_ge_u32 s2, 256
    s_cbranch_scc1 {P}_end
    """)
    stamp_init(a)
    a(f"""
    s_load_dwordx2 s[4:5], s[0:1], {KA_WS}
    v_lshrrev_b32 v{vT0}, 6, v0
    v_and_b32 v{vOFF}, 63, v0
    v_readfirstlane_b32 s8, v{vT0}          ; wave
    v_lshlrev_b32 v{vOFF}, 4, v{vOFF}
    s_and_b32 s9, s2, 7
    s_lshr_b32 s10, s2, 3
    s_lshl_b32 s9, s9, 2
    s_and_b32 s11, s10, 3
    s_add_u32 s9, s9, s11                   ; head
    s_lshr_b32 s10, s10, 2                  ; qblock
    s_lshl_b32 s12, s9, 16                  ; head*64K
    s_lshl_b32 s13, s8, 10                  ; wave*1K
    s_add_u32 s12, s12, s13
    s_lshl_b32 s14, s10, 13                 ; qblock*8K
    s_add_u32 s15, s12, s14
    s_mov_b32 s6, {WS_BYTES}
    s_mov_b32 s7, 0x20000
    s_waitcnt lgkmcnt(0)
    buffer_load_dwordx4 {vr(vQ,4)}, v{vOFF}, s[4:7], s15 offen
    """)
    for c in range(8):
        a(f"""
        s_add_u32 s16, s12, s14
        s_add_u32 s17, s16, {WS_VF}
        s_add_u32 s16, s16, {WS_KF}
        s_add_u32 m0, s13, {LDS_K + c*8192}
        s_add_u32 s14, s14, 0x2000
        buffer_load_dwordx4 v{vOFF}, s[4:7], s16 offen lds
        s_add_u32 m0, s13, {LDS_V + c*8192}
        s_and_b32 s14, s14, 0xffff
        buffer_load_dwordx4 v{vOFF}, s[4:7], s17 offen lds
        """)
    a.c("ones region")
    a(f"""
    v_mov_b32 v{vS[0]}, 0x3f803f80
    v_mov_b32 v{vS[0]+1}, 0x3f803f80
    v_mov_b32 v{vS[0]+2}, 0x3f803f80
    v_mov_b32 v{vS[0]+3}, 0x3f803f80
    """)
    if EXPT.get("fewones"):
        a(f"""
        v_and_b32 v{vT0}, 11, v0
        v_cmp_eq_u32 vcc, 0, v{vT0}
        s_nop 1
        v_cndmask_b32 v{vS[0]}, 0, v{vS[0]}, vcc
        v_cndmask_b32 v{vS[0]+1}, 0, v{vS[0]+1}, vcc
        v_cndmask_b32 v{vS[0]+2}, 0, v{vS[0]+2}, vcc
        v_cndmask_b32 v{vS[0]+3}, 0, v{vS[0]+3}, vcc
        """)
    a(f"""
    v_lshlrev_b32 v{vT0}, 4, v0
    v_add_u32 v{vT0}, {LDS_ONES}, v{vT0}
    ds_write_b128 v{vT0}, {vr(vS[0],4)}
    ds_write_b128 v{vT0}, {vr(vS[0],4)} offset:2048
    v_mov_b32 v{vIDX}, 0xdddd
    """)
    addr_setup(a)
    a("s_waitcnt vmcnt(14) lgkmcnt(0)\ns_barrier")
    stamp(a, 1)
    attention_core(a, P, variant)
    a(f"""
    s_lshl_b32 s16, s10, 3
    s_add_u32 s16, s16, s8                  ; qtile
    s_lshl_b32 s16, s16, 5
    s_add_u32 s16, s16, s9
    s_lshl_b32 s16, s16, 10
    s_add_u32 s16, s16, {WS_OF}
    buffer_store_dwordx4 {vr(vO,4)}, v{vOFF}, s[4:7], s16 offen
    """)
    stamp(a, 2)
    stamp_flush(a, 1)
    a(f"{P}_end:\ns_endpgm")
    return kernel_header(name) + a.text() + kernel_desc(name, ATT_VGPR)
```

```python
from asmlib import *
import struct, math
def f32bits(x): return struct.unpack("<I", struct.pack("<f", x))[0]

G_PS = 136 * 16
G_CS = 2 * G_PS
G_SS = 16 * G_CS
G_TS = 16 * G_SS
K1_LDS = 131072
LX, LW = 0, 65536
QSCALE = 0.25 * math.log2(math.e)
VSCALE = 1.0

sWAVE, sXCD, sI, sJ, sROT = 8, 9, 10, 11, 12
sX, sW, sWS = 16, 20, 24
K1_VGPR = 144

def gemm_loop(a, P, mode):
    vXA, vWA, F0, ACC = 4, 8, 16, 64
    if mode == 'f':
        nx, setsz = 4, 20
    else:
        nx, setsz = 2, 16
    def reads(slot, ks, st):
        base = F0 + st * setsz
        r = []
        if mode == 'f':
            r.append(f"ds_read_b128 {vr(base+16,4)}, v{vWA+ks} offset:{slot*16384}")
            for t in range(4): r.append(f"ds_read_b128 {vr(base+4*t,4)}, v{vXA+ks} offset:{slot*16384+t*4096}")
        else:
            r.append(f"ds_read_b128 {vr(base,4)}, v{vXA+ks} offset:{slot*16384}")
            for z in range(2): r.append(f"ds_read_b64_tr_b16 {vr(base+8+2*z,2)}, v{vWA} offset:{slot*16384+ks*4096+z*1024}")
            for z in range(2): r.append(f"ds_read_b64_tr_b16 {vr(base+12+2*z,2)}, v{vWA+1} offset:{slot*16384+ks*4096+z*1024}")
            r.append(f"ds_read_b128 {vr(base+4,4)}, v{vXA+ks} offset:{slot*16384+4096}")
        return r
    def mfmas(st, first):
        base = F0 + st * setsz
        m = []
        if mode == 'f':
            for t in range(4):
                c = "0" if first else vr(ACC+16*t,16)
                m.append(f"v_mfma_f32_32x32x16_bf16 {vr(ACC+16*t,16)}, {vr(base+4*t,4)}, {vr(base+16,4)}, {c}")
        else:
            for (x, w) in ((0,0),(0,1),(1,0),(1,1)):
                t = 2*x + w
                c = "0" if first else vr(ACC+16*t,16)
                X, W = vr(base+4*x,4), vr(base+8+4*w,4)
                A, B = (W, X) if mode == 'qk' else (X, W)
                m.append(f"v_mfma_f32_32x32x16_bf16 {vr(ACC+16*t,16)}, {A}, {B}, {c}")
        return m
    stamp(a, 1)
    a("s_barrier")
    stamp(a, 2)
    for r in reads(0, 0, 0): a(r)
    steps = [(c, ks) for c in range(8) for ks in range(4)]
    for n, (c, ks) in enumerate(steps):
        st = n & 1
        a("s_waitcnt lgkmcnt(0)")
        nxt = steps[n+1] if n + 1 < len(steps) else None
        if nxt and nxt[1] == 0: a("s_barrier")
        rd = reads(nxt[0] & 3, nxt[1], st ^ 1) if nxt else []
        m = mfmas(st, n == 0)
        split = [3, 3, 0, 0] if len(rd) == 6 else [2, 2, 1, 0]
        for i in range(4):
            a(m[i])
            for _ in range(split[i]):
                if rd: a(rd.pop(0))
    stamp(a, 3)

def lane_consts(a):
    a("""
    v_and_b32 v1, 63, v0
    v_and_b32 v2, 31, v0
    v_bfe_u32 v3, v0, 5, 1
    """)

def xaddr(a, dst, rowreg, base, tmp):
    a(f"""
    v_bfe_u32 v{tmp}, v{rowreg}, 1, 3
    v_xor_b32 v{tmp}, v{tmp}, v3
    v_lshlrev_b32 v{tmp}, 4, v{tmp}
    v_lshl_add_u32 v{dst}, v{rowreg}, 7, v{tmp}
    """)
    if base: a(f"v_add_u32 v{dst}, {base}, v{dst}")
    for ks in range(1, 4): a(f"v_xor_b32 v{dst+ks}, {ks*32}, v{dst}")

def phase1(a, P, store_flags="", loader_pre=None, loader_mid=None, loader_post=None, comp_pre=None):
    a(f"""
    s_load_dwordx2 s[{sWS}:{sWS+1}], s[0:1], {KA_WS}
    v_lshrrev_b32 v1, 6, v0
    s_and_b32 s{sXCD}, s2, 7
    v_readfirstlane_b32 s{sWAVE}, v1
    s_lshr_b32 s3, s2, 3
    s_and_b32 s{sI}, s3, 7
    s_lshr_b32 s{sJ}, s3, 3
    s_lshl_b32 s{sROT}, s{sJ}, 1
    s_add_u32 s{sROT}, s{sROT}, s{sI}
    s_and_b32 s{sROT}, s{sROT}, 7
    s_and_b32 s3, s{sXCD}, 1
    s_lshl_b32 s3, s3, 3
    s_add_u32 s{sI}, s{sI}, s3
    s_lshr_b32 s{sXCD}, s{sXCD}, 1
    s_mov_b32 s{sWS+2}, {WS_BYTES}
    s_mov_b32 s{sWS+3}, 0x20000
    s_mov_b32 s{sX+2}, 0x200000
    s_mov_b32 s{sX+3}, 0x20000
    s_mov_b32 s{sW+3}, 0x20000
    """)
    lane_consts(a)
    a(f"""
    s_cmp_lt_u32 s{sWAVE}, 4
    s_cbranch_scc1 {P}_comp
    """)
    sLW, sXO, sWO, sXQ, sWQ, sWC, sM, sCH = 13, 28, 29, 30, 31, 32, 33, 34
    a(f"""
    s_sub_u32 s{sLW}, s{sWAVE}, 4
    v_lshrrev_b32 v4, 3, v1
    v_and_b32 v5, 7, v1
    v_lshrrev_b32 v6, 4, v1
    v_xor_b32 v5, v5, v6
    v_lshlrev_b32 v5, 4, v5
    s_mov_b64 s[36:37], -1
    s_cmp_eq_u32 s{sXCD}, 3
    s_cbranch_scc1 {P}_ldf
    s_load_dwordx2 s[{sX}:{sX+1}], s[0:1], {KA_BX}
    s_load_dwordx2 s[{sW}:{sW+1}], s[0:1], {KA_WQKV}
    s_mov_b32 s{sW+2}, {512*3072}
    v_lshl_add_u32 v8, v4, 10, v5
    v_xor_b32 v9, 64, v8
    v_and_b32 v7, 15, v1
    v_lshlrev_b32 v10, 2, v6
    v_xor_b32 v7, v7, v10
    v_lshlrev_b32 v7, 4, v7
    v_mul_u32_u24 v10, 3072, v6
    v_add_u32 v10, v10, v7
    v_mov_b32 v11, v10
    s_lshl_b32 s{sXO}, s{sI}, 17
    s_lshl_b32 s3, s{sLW}, 15
    s_add_u32 s{sXO}, s{sXO}, s3
    s_movk_i32 s{sXQ}, 0x2000
    s_lshl_b32 s{sWO}, s{sXCD}, 2
    s_add_u32 s{sWO}, s{sWO}, s{sJ}
    s_lshl_b32 s{sWO}, s{sWO}, 8
    s_mul_i32 s3, s{sLW}, {16*3072}
    s_add_u32 s{sWO}, s{sWO}, s3
    s_movk_i32 s{sWQ}, {4*3072}
    s_mov_b32 s{sWC}, {64*3072}
    s_branch {P}_ldgo
    {P}_ldf:
    s_load_dwordx2 s[{sX}:{sX+1}], s[0:1], {KA_AX}
    s_lshr_b32 s3, s{sJ}, 1
    s_lshl_b32 s3, s3, 3
    s_add_u32 s3, s3, {KA_HRE}
    s_load_dwordx2 s[{sW}:{sW+1}], s[0:1], s3
    s_mov_b32 s{sW+2}, {512*1024}
    v_lshl_add_u32 v8, v4, 16, v5
    v_xor_b32 v9, 64, v8
    v_lshl_add_u32 v10, v4, 11, v5
    v_xor_b32 v11, 64, v10
    s_lshl_b32 s{sXO}, s{sI}, 2
    s_add_u32 s{sXO}, s{sXO}, s{sLW}
    s_lshl_b32 s{sXO}, s{sXO}, 10
    s_mov_b32 s{sXQ}, 0x80000
    s_and_b32 s{sWO}, s{sJ}, 1
    s_lshl_b32 s{sWO}, s{sWO}, 10
    s_lshl_b32 s3, s{sLW}, 16
    s_add_u32 s{sWO}, s{sWO}, s3
    s_movk_i32 s{sWQ}, 0x4000
    s_movk_i32 s{sWC}, 128
    s_lshl_b32 s3, s{sLW}, 4
    s_add_u32 s3, s3, s{sJ}
    s_cmp_eq_u32 s3, 2
    s_cbranch_scc0 {P}_ldgo
    s_mov_b32 s36, 0xffffff00
    v_mov_b32 v12, 0xbf803f80
    v_lshlrev_b32 v13, 2, v2
    v_lshl_add_u32 v13, v3, 14, v13
    v_add_u32 v13, {LW}, v13
    ds_write_b32 v13, v12
    ds_write_b32 v13, v12 offset:32768
    {P}_ldgo:
    s_lshl_b32 s{sM}, s{sLW}, 12
    s_mov_b32 s{sCH}, s{sROT}
    s_waitcnt lgkmcnt(0)
    """)
    def issue(n):
        slot = n & 3
        a(f"""
        s_lshl_b32 s38, s{sCH}, 7
        s_add_u32 s38, s38, s{sXO}
        s_mul_i32 s39, s{sCH}, s{sWC}
        s_add_u32 s39, s39, s{sWO}
        s_add_u32 s{sCH}, s{sCH}, 1
        s_and_b32 s{sCH}, s{sCH}, 7
        """)
        for q in range(4):
            a(f"s_add_u32 m0, s{sM}, {LX + slot*16384 + q*1024}")
            a("s_nop 0" if q == 0 else f"s_add_u32 s39, s39, s{sWQ}")
            a(f"buffer_load_dwordx4 v{8 + (q&1)}, s[{sX}:{sX+3}], s38 offen lds")
            a(f"s_add_u32 m0, s{sM}, {LW + slot*16384 + q*1024}")
            a(f"s_add_u32 s38, s38, s{sXQ}")
            if q == 0: a("s_mov_b64 exec, s[36:37]")
            a(f"buffer_load_dwordx4 v{10 + (q&1)}, s[{sW}:{sW+3}], s39 offen lds")
            if q == 0: a("s_mov_b64 exec, -1")
    if loader_pre: loader_pre(sLW)
    issue(0)
    if loader_mid: loader_mid(sLW)
    issue(1)
    for c in range(8):
        a(f"s_waitcnt vmcnt({8 if c < 7 else 0})")
        a("s_barrier")
        if c + 2 < 8: issue(c + 2)
    if loader_post:
        loader_post(sLW)
        a(f"s_branch {P}_p1done")
    else:
        a.c("twiddle fragments for FNet phase 2")
        a(f"""
        s_lshl_b32 s3, s2, 1
        s_lshr_b32 s38, s{sLW}, 1
        s_add_u32 s3, s3, s38
        s_and_b32 s38, s3, 7                    ; kk
        s_lshr_b32 s39, s3, 4                   ; r'
        s_bfe_u32 s40, s3, 0x10003              ; mt
        s_and_b32 s41, s{sLW}, 1                ; type
        s_lshl_b32 s42, s40, 10
        s_add_u32 s42, s42, s39
        v_lshl_add_u32 v4, v2, 5, s42           ; t
        s_lshl_b32 s42, s38, 3
        v_lshl_add_u32 v5, v3, 2, s42           ; s2 base
        v_mul_u32_u24 v6, v4, v5
        s_lshl_b32 s42, s41, 9
        v_subrev_u32 v6, s42, v6
        s_mov_b32 s43, 1.0                      ; p
        s_mov_b32 s44, 0                        ; q
        s_mov_b32 s45, -1.0                     ; -sigma
        s_cmp_gt_u32 s39, 16
        s_cselect_b32 s45, 1.0, s45
        s_and_b32 s46, s39, 15
        s_cselect_b32 s45, s45, 0
        s_cmp_eq_u32 s39, 16
        s_cselect_b32 s43, 0, s43
        s_cselect_b32 s44, 1.0, s44
        """)
        for T in range(4):
            a(f"""
            v_and_b32 v7, 0x7ff, v6
            v_cvt_f32_u32 v7, v7
            v_mul_f32 v7, {hex(f32bits(1/2048))}, v7
            v_cos_f32 v8, v7
            v_sin_f32 v9, v7
            v_add_u32 v6, v6, v4
            v_mul_f32 v9, s45, v9
            v_fmac_f32 v9, s44, v8
            v_mul_f32 v8, s43, v8
            v_cvt_pk_bf16_f32 v{12+T}, v8, v9
            """)
        a(f"""
        s_lshr_b32 s42, s3, 3                   ; r'*2+mt
        s_lshl_b32 s42, s42, 4
        s_lshl_b32 s41, s41, 3
        s_add_u32 s42, s42, s41
        s_add_u32 s42, s42, s38
        s_lshl_b32 s42, s42, 10
        s_add_u32 s42, s42, {WS_TW}
        v_lshlrev_b32 v4, 4, v1
        buffer_store_dwordx4 v[12:15], v4, s[{sWS}:{sWS+3}], s42 offen {store_flags}
        s_branch {P}_p1done
        """)
    a(f"""
    {P}_comp:
    """)
    if comp_pre: comp_pre()
    a(f"""
    s_cmp_eq_u32 s{sXCD}, 3
    s_cbranch_scc1 {P}_cf
    s_and_b32 s28, s{sWAVE}, 1              ; wm
    s_lshr_b32 s29, s{sWAVE}, 1             ; wn
    """)
    a.c("W (tr) addresses")
    a(f"""
    v_bfe_u32 v12, v1, 2, 2                 ; r
    s_lshl_b32 s3, s29, 1
    v_xor_b32 v13, s3, v12
    v_lshlrev_b32 v13, 6, v13
    v_lshl_add_u32 v13, v12, 8, v13         ; r*256 + blk*64
    v_lshl_add_u32 v13, v3, 11, v13         ; + 8h rows
    v_bfe_u32 v14, v1, 4, 1
    v_lshl_add_u32 v13, v14, 5, v13
    v_and_b32 v14, 3, v1
    v_lshl_add_u32 v13, v14, 3, v13
    v_add_u32 v8, {LW}, v13
    v_xor_b32 v9, 64, v8
    s_lshl_b32 s3, s28, 6
    s_lshl_b32 s30, s{sJ}, 3
    s_lshl_b32 s31, s29, 2
    s_add_u32 s30, s30, s31
    s_lshl_b32 s30, s30, 16
    s_lshl_b32 s31, s{sI}, 2
    s_lshl_b32 s32, s28, 1
    s_add_u32 s31, s31, s32
    s_lshl_b32 s31, s31, 10
    s_add_u32 s30, s30, s31
    s_lshl_b32 s31, s{sXCD}, 21
    s_add_u32 s30, s30, s31
    s_cmp_eq_u32 s{sXCD}, 2
    s_cbranch_scc1 {P}_cv
    v_add_u32 v12, s3, v2
    """)
    xaddr(a, 4, 12, LX, 13)
    a(f"""
    v_lshlrev_b32 v10, 4, v1
    s_mov_b32 s31, 0x10000                  ; z stride
    s_cmp_eq_u32 s{sXCD}, 0
    s_cselect_b32 s32, {hex(f32bits(QSCALE))}, 1.0
    """)
    gemm_loop(a, P, 'qk')
    a(f"""
    s_branch {P}_epi
    {P}_cv:
    v_and_b32 v12, 0x13, v2
    v_bfe_u32 v13, v2, 2, 1
    v_lshl_add_u32 v12, v13, 3, v12
    v_bfe_u32 v13, v2, 3, 1
    v_lshl_add_u32 v12, v13, 2, v12
    v_add_u32 v12, s3, v12
    """)
    xaddr(a, 4, 12, LX, 13)
    a(f"""
    v_and_b32 v10, 15, v1
    v_lshlrev_b32 v10, 4, v10
    v_lshl_add_u32 v10, v3, 8, v10
    v_bfe_u32 v13, v1, 4, 1
    v_lshl_add_u32 v10, v13, 16, v10
    s_movk_i32 s31, 512
    s_mov_b32 s32, {hex(f32bits(VSCALE))}
    """)
    gemm_loop(a, P, 'v')
    a(f"{P}_epi:\ns_mov_b32 s33, s32\ns_nop 7")
    for x in range(2):
        for w in range(2):
            acc = 64 + 16 * (2*x + w)
            for z in range(2):
                d = 16 + 4 * ((2*w + z) & 3) + 16 * x
                for i in range(0, 8, 2): a(f"v_pk_mul_f32 {vr(acc+8*z+i,2)}, {vr(acc+8*z+i,2)}, s[32:33]")
                for i in range(4): a(f"v_cvt_pk_bf16_f32 v{d+i}, v{acc+8*z+2*i}, v{acc+8*z+2*i+1}")
                if z == 0: a(f"s_add_u32 s34, s30, {w*0x20000 + x*1024}")
                else: a(f"s_add_u32 s34, s34, s31")
                a(f"buffer_store_dwordx4 {vr(d,4)}, v10, s[{sWS}:{sWS+3}], s34 offen {store_flags}")
    a(f"s_branch {P}_p1done")
    a(f"{P}_cf:")
    xaddr(a, 4, 2, LX, 13)
    a(f"s_lshl_b32 s3, s{sWAVE}, 5\nv_add_u32 v12, s3, v2")
    xaddr(a, 8, 12, LW, 13)
    a.c("real DFT-32 matrix fragments in v[128:135]")
    a(f"""
    v_bfe_u32 v13, v2, 2, 1                 ; h'
    v_lshlrev_b32 v13, 3, v13
    v_lshrrev_b32 v14, 3, v2                ; j
    v_lshl_add_u32 v13, v14, 1, v13
    v_bfe_u32 v14, v2, 1, 1
    v_add_u32 v13, v13, v14                 ; slot
    v_and_b32 v14, 1, v2                    ; comp
    v_cmp_eq_u32 vcc, 1, v2
    v_cvt_f32_u32 v14, v14
    v_mul_f32 v14, 0xbe800000, v14          ; phase -0.25
    v_cndmask_b32 v13, v13, 16, vcc
    v_cndmask_b32 v14, v14, 0, vcc
    v_cvt_f32_u32 v13, v13
    v_mul_f32 v13, {hex(f32bits(1/32))}, v13
    v_cvt_f32_u32 v15, v3
    v_mul_f32 v15, 4.0, v15
    v_fma_f32 v14, v15, v13, v14
    """)
    for kk in range(2):
        for s in range(0, 8, 2):
            for u in range(2):
                s1 = 16*kk + 8*((s+u)//4) + (s+u) % 4
                a(f"s_mov_b32 s3, {hex(f32bits(float(s1)))}")
                a(f"v_fma_f32 v{136+u}, s3, v13, v14")
                a(f"v_cos_f32 v{136+u}, v{136+u}")
            a("s_nop 0")
            a(f"v_cvt_pk_bf16_f32 v{128+4*kk+s//2}, v136, v137")
    a(f"""
    v_lshlrev_b32 v14, 4, v12               ; idx*16
    s_mov_b32 s3, {8*G_SS}
    v_mad_u32_u24 v14, v3, s3, v14
    s_lshr_b32 s28, s{sJ}, 1
    s_mul_i32 s28, s28, {G_TS}
    v_add_u32 v14, s28, v14
    s_cmp_eq_u32 s{sJ}, 2
    s_cselect_b32 s28, 0, -1
    v_cmp_eq_u32 vcc, s28, v12
    v_subrev_u32 v15, {G_TS - 128*16}, v14
    s_and_b32 s30, s{sJ}, 1
    v_cndmask_b32 v140, v14, v15, vcc
    s_mul_i32 s30, s30, {G_PS}
    s_mul_i32 s31, s{sI}, {G_CS}
    s_add_u32 s30, s30, s31
    s_add_u32 s30, s30, {WS_G}
    """)
    gemm_loop(a, P, 'f')
    a("s_nop 9")
    for T in range(4):
        for i in range(8): a(f"v_cvt_pk_bf16_f32 v{16+8*T+i}, v{64+16*T+2*i}, v{64+16*T+2*i+1}")
    a("s_nop 1")
    for T in range(4): a(f"v_mfma_f32_32x32x16_bf16 {vr(64+16*T,16)}, v[128:131], {vr(16+8*T,4)}, 0")
    for T in range(4): a(f"v_mfma_f32_32x32x16_bf16 {vr(64+16*T,16)}, v[132:135], {vr(20+8*T,4)}, {vr(64+16*T,16)}")
    a("s_nop 11")
    for i in range(8):
        for T in range(4): a(f"v_cvt_pk_bf16_f32 v{16+4*i+T}, v{64+16*T+2*i}, v{64+16*T+2*i+1}")
        a(f"buffer_store_dwordx4 {vr(16+4*i,4)}, v140, s[{sWS}:{sWS+3}], s30 offen {store_flags}")
        if i < 7: a(f"s_add_u32 s30, s30, {G_SS}")
    a(f"{P}_p1done:")

def gen_k1(name):
    a = Asm()
    a(f"s_cmp_ge_u32 s2, 256\ns_cbranch_scc1 {name}_end")
    stamp_init(a)
    phase1(a, name)
    stamp(a, 4)
    stamp_flush(a, 0)
    a(f"{name}_end:\ns_endpgm")
    return kernel_header(name) + a.text() + kernel_desc(name, K1_VGPR)
```

```python
import sys
from asmlib import *
import asmlib, k1, attn
from k1 import f32bits, G_PS, G_CS, G_SS, G_TS, sWAVE, sWS, sXCD, sI, sJ
from attn import vKA, vVA, vIDX, vVST, vT0, vT1, vOFF, vQ, vK, vV0, vV1, vS, vC, vO, LDS_K, LDS_V, LDS_ONES
NAME = "concat_heads__spectral_fnet__softmax_full_mha__prompt"
LDS_XB = LDS_ONES + 10240
LDS_NONCE = LDS_XB + 16384
LDS_BYTES = LDS_NONCE + 64
VGPRS = 216
vTW, vG, vWO = 88, 120, 88
sN = 48
sHEAD, sQB, sR, sJJ, sSLOT = 50, 51, 52, 53, 54
sKVO, sRUN, sM0 = 55, 56, 57
sOUT = 20
SHIFT = 100.0
VS_LOG2 = 32
ONES = (127 + VS_LOG2) << 7
SPIN_MAX = 0x40000
OPT = dict(codepf=1, prio=0)

def wg_roles(a):
    a(f"""
    s_and_b32 s58, s2, 7
    s_lshr_b32 s59, s2, 3
    s_lshl_b32 s{sHEAD}, s58, 2
    s_and_b32 s60, s59, 3
    s_add_u32 s{sHEAD}, s{sHEAD}, s60       ; head
    s_lshr_b32 s{sQB}, s59, 2               ; q block
    s_mov_b32 s{sJJ}, s{sQB}
    s_lshl_b32 s{sSLOT}, s58, 1
    s_and_b32 s61, s60, 1
    s_add_u32 s{sSLOT}, s{sSLOT}, s61       ; slot
    s_sub_u32 s61, 32, s{sSLOT}
    s_cmp_eq_u32 s{sSLOT}, 0
    s_cselect_b32 s61, 16, s61
    s_cmp_lt_u32 s60, 2
    s_cselect_b32 s{sR}, s{sSLOT}, s61      ; residue r'
    """)

def poll(a, P, tag, vaddr, vd, soff):
    a(f"""
    s_mov_b32 s62, 0
    {P}_{tag}_spin:
    buffer_load_dwordx2 {vr(vd,2)}, v{vaddr}, s[{sWS}:{sWS+3}], {soff} offen sc1
    s_waitcnt vmcnt(0)
    v_cmp_ne_u64 vcc, s[{sN}:{sN+1}], {vr(vd,2)}
    s_add_u32 s62, s62, 1
    s_cbranch_vccz {P}_{tag}_ok
    s_cmp_lt_u32 s62, {SPIN_MAX}
    s_cbranch_scc1 {P}_{tag}_spin
    {P}_{tag}_ok:
    """)

def flag_store(a, soff_reg):
    a(f"""
    v_mov_b32 v{vT0+1}, s{sN}
    v_mov_b32 v{vT0+2}, s{sN+1}
    v_mov_b32 v{vT0}, 0
    s_mov_b64 exec, 1
    buffer_store_dwordx2 {vr(vT0+1,2)}, v{vT0}, s[{sWS}:{sWS+3}], s{soff_reg} offen sc1
    s_mov_b64 exec, -1
    """)

def utile(a, t, ins):
    cur, nxt = vS[t & 1], vS[(t + 1) & 1]
    tt = t & 7
    e = lambda i: a(f"v_exp_f32 v{cur+i}, v{cur+i}")
    pq, p0 = 5, 10
    def extra(k):
        for x in ins.get(k, []): a(x)
    e(0); e(1)
    a("s_waitcnt lgkmcnt(0)")
    if t > 0: a(f"v_smfmac_f32_32x32x32_bf16 {vr(vO,16)}, {vr(vV1,4)}, {vr(nxt+8,8)}, v{vIDX}")
    a(f"ds_read_b128 {vr(vV1,4)}, v{vVA} offset:{tt*1024+512}")
    extra(0)
    for i in range(2, pq): e(i)
    if t < 63: a(f"v_mfma_f32_32x32x16_bf16 {vr(nxt,16)}, {vr(vK,4)}, {vr(vQ,4)}, {vr(vC,16)}")
    if t < 62: a(f"ds_read_b128 {vr(vK,4)}, v{vKA} offset:{(t+2)*1024}")
    extra(1)
    for i in range(pq, p0): e(i)
    a(f"v_smfmac_f32_32x32x32_bf16 {vr(vO,16)}, {vr(vV0,4)}, {vr(cur,8)}, v{vIDX}")
    if t < 63: a(f"ds_read_b128 {vr(vV0,4)}, v{vVA} offset:{(tt+1)*1024}")
    extra(2)
    for i in range(p0, 16): e(i)
    if tt == 7 and t < 63: a(f"v_add_u32 v{vVA}, v{vVST}, v{vVA}")

def kv_dma(c):
    k = [f"s_add_u32 s58, s{sKVO}, s{sRUN}",
         f"s_add_u32 m0, s{sM0}, {LDS_K + c*8192}",
         f"s_add_u32 s{sRUN}, s{sRUN}, 0x2000",
         f"buffer_load_dwordx4 v{vOFF}, s[{sWS}:{sWS+3}], s58 offen sc1 lds"]
    v = [f"s_add_u32 s58, s58, {WS_VF - WS_KF}",
         f"s_add_u32 m0, s{sM0}, {LDS_V + c*8192}",
         f"s_and_b32 s{sRUN}, s{sRUN}, 0xffff",
         f"buffer_load_dwordx4 v{vOFF}, s[{sWS}:{sWS+3}], s58 offen sc1 lds"]
    return k, v

def attn_role(a, P, role):
    vGE, vGB, vGO, vFA, vFD = 184, 185, 186, 187, 188
    for t in range(64):
        ins = {}
        if t <= 10 and t % 2 == 0:
            k, v = kv_dma(2 + t // 2)
            ins[0], ins[2] = k, v
        if t == 6: a("s_waitcnt vmcnt(6)\ns_barrier")
        if role == 'B' and t == 11:
            ins[0] = [f"buffer_load_dwordx2 {vr(vFD,2)}, v{vFA}, s[{sWS}:{sWS+3}], 0 offen sc1"]
        if t == 14:
            a("s_waitcnt vmcnt(0)")
            if role == 'B':
                a(f"v_cmp_ne_u64 vcc, s[{sN}:{sN+1}], {vr(vFD,2)}\ns_nop 0\ns_cbranch_vccz {P}_all_ok")
                poll(a, P, "all", vFA, vFD, "0")
            a("s_barrier")
        if role == 'A' and 16 <= t < 48:
            i = t - 16
            ins[0] = [f"s_add_u32 s58, s63, s64",
                      f"s_add_u32 s64, s64, 0x400",
                      f"s_and_b32 s64, s64, 0x7fff",
                      f"buffer_load_dwordx4 {vr(vWO+4*i,4)}, v{vOFF}, s[{sWS}:{sWS+3}], s58 offen sc1"]
        if role == 'B' and 16 <= t < 48 and t % 2 == 0:
            i = (t - 16) // 2
            kq, ty, par = i >> 2, (i >> 1) & 1, i & 1
            va = vGO if par else (vGB if ty else vGE)
            ins[0] = [f"s_add_u32 s58, s63, {ty*G_TS + 2*kq*G_CS}",
                      f"buffer_load_dwordx4 {vr(vG+4*i,4)}, v{va}, s[{sWS}:{sWS+3}], s58 offen sc1"]
        if OPT['prio']:
            pr = {16: 3, 44: 2, 56: 1, 61: 0}.get(t)
            if pr is not None: ins.setdefault(1, []).append(f"s_setprio {pr}")
        utile(a, t, ins)
    a(f"s_branch {P}_attn_done")

def gen_kernel(name):
    a = Asm(); P = "F"
    a(f"s_cmp_ge_u32 s2, 256\ns_cbranch_scc1 {P}_end")
    stamp_init(a)
    vWG = 32
    def gather(sLW):
        a.c("gather one Wo fragment (loader waves 0,1)")
        a(f"""
        s_load_dwordx2 s[68:69], s[0:1], {KA_DBG}
        s_cmp_ge_u32 s{sLW}, 2
        s_cbranch_scc1 {P}_nowo
        s_load_dwordx2 s[64:65], s[0:1], {KA_WO}
        s_mov_b32 s66, 0x80000
        s_mov_b32 s67, 0x20000
        s_lshl_b32 s63, s2, 1
        s_add_u32 s63, s63, s{sLW}
        s_and_b32 s58, s63, 31
        s_lshl_b32 s58, s58, 14
        s_lshr_b32 s59, s63, 5
        s_lshl_b32 s59, s59, 6
        s_add_u32 s58, s58, s59
        v_and_b32 v12, 3, v2
        v_lshrrev_b32 v13, 3, v2
        v_lshl_add_u32 v12, v13, 2, v12
        v_bfe_u32 v13, v2, 2, 1
        v_lshl_add_u32 v12, v13, 4, v12
        v_lshlrev_b32 v12, 1, v12
        v_lshl_add_u32 v12, v3, 12, v12
        s_add_u32 s59, s58, 0x2000
        s_waitcnt lgkmcnt(0)
        """)
        for s in range(8):
            a(f"buffer_load_ushort v{vWG + s}, v12, s[64:67], s{58 + s//4} offen offset:{(s&3)*1024}")
        a(f"{P}_nowo:")
    def loader_mid(sLW):
        wg_roles(a)
        a.c("ones region (rows 16 and 20 of the V operand)")
        a(f"""
        v_and_b32 v12, 11, v1
        v_cmp_eq_u32 vcc, 0, v12
        v_mov_b32 v13, 0x{ONES:04x}{ONES:04x}
        v_subrev_u32 v12, 0x100, v0
        v_cndmask_b32 v20, 0, v13, vcc
        v_lshlrev_b32 v12, 4, v12
        v_mov_b32 v21, v20
        v_mov_b32 v22, v20
        v_mov_b32 v23, v20
        v_add_u32 v12, {LDS_ONES}, v12
        ds_write_b128 v12, v[20:23]
        ds_write_b128 v12, v[20:23] offset:4096
        ds_write_b128 v12, v[20:23] offset:6144
        """)
        a.c("sequence-DFT twiddles of this wave's FNet job, kept in registers")
        a(f"""
        s_and_b32 s58, s{sLW}, 1                ; mt
        s_lshr_b32 s59, s{sLW}, 1               ; kh
        s_lshl_b32 s60, s59, 4
        v_xor_b32 v12, s60, v2
        s_lshl_b32 s60, s58, 10
        s_add_u32 s60, s60, s{sR}
        v_lshl_add_u32 v12, v12, 5, s60         ; t
        s_lshl_b32 s60, s59, 5
        v_lshl_add_u32 v13, v3, 2, s60          ; first s2
        v_mul_u32_u24 v13, v12, v13
        v_lshlrev_b32 v14, 2, v12               ; 4t
        s_mov_b32 s40, 1.0                      ; p
        s_mov_b32 s41, 0                        ; q
        s_mov_b32 s42, -1.0                     ; -sigma
        s_cmp_gt_u32 s{sR}, 16
        s_cselect_b32 s42, 1.0, s42
        s_cmp_eq_u32 s{sSLOT}, 0
        s_cselect_b32 s42, 0, s42
        s_cmp_eq_u32 s{sR}, 16
        s_cselect_b32 s40, 0, s40
        s_cselect_b32 s41, 1.0, s41
        s_cmp_ge_u32 s{sJJ}, 4
        s_cselect_b32 s46, 0x80000000, 0
        s_xor_b32 s43, s40, s46                 ; mu*p
        s_xor_b32 s44, s41, s46                 ; mu*q
        s_xor_b32 s45, s42, s46
        s_xor_b32 s45, s45, 0x80000000          ; mu*sigma
        """)
        for kq in range(4):
            for T in range(4):
                a(f"""
                v_and_b32 v24, 0x7ff, v13
                v_cvt_f32_u32 v24, v24
                v_mul_f32 v24, {hex(f32bits(1/2048))}, v24
                v_cos_f32 v25, v24
                v_sin_f32 v26, v24
                v_add_u32 v13, v13, v12
                v_mul_f32 v27, s40, v25
                v_mul_f32 v28, s42, v26
                v_fmac_f32 v28, s41, v25
                v_cvt_pk_bf16_f32 v{vTW + 8*kq + T}, v27, v28
                v_mul_f32 v27, s43, v26
                v_mul_f32 v28, s45, v25
                v_fmac_f32 v28, s44, v26
                v_cvt_pk_bf16_f32 v{vTW + 8*kq + 4 + T}, v27, v28
                """)
            if kq < 3: a("v_add_u32 v13, v13, v14")
        gather(sLW)
    def loader_post(sLW):
        a(f"""
        s_cmp_ge_u32 s{sLW}, 2
        s_cbranch_scc1 {P}_nowo2
        s_lshl_b32 s63, s63, 10
        s_add_u32 s63, s63, {WS_WOF}
        v_lshlrev_b32 v12, 4, v1
        v_lshl_or_b32 v{vWG}, v{vWG+1}, 16, v{vWG}
        v_lshl_or_b32 v{vWG+1}, v{vWG+3}, 16, v{vWG+2}
        v_lshl_or_b32 v{vWG+2}, v{vWG+5}, 16, v{vWG+4}
        v_lshl_or_b32 v{vWG+3}, v{vWG+7}, 16, v{vWG+6}
        buffer_store_dwordx4 {vr(vWG,4)}, v12, s[{sWS}:{sWS+3}], s63 offen sc1
        {P}_nowo2:
        s_cmp_lg_u32 s{sLW}, 3
        s_cbranch_scc1 {P}_p1done
        """)
        a.c("fetch the launch tag published by workgroup 0")
        a(f"""
        v_mov_b32 v12, 0
        s_mov_b32 s62, 0
        s_waitcnt lgkmcnt(0)
        {P}_tag_spin:
        global_load_dwordx2 v[14:15], v12, s[68:69] sc1
        s_waitcnt vmcnt(0)
        v_cmp_eq_u32 vcc, 0, v14
        s_add_u32 s62, s62, 1
        s_cbranch_vccz {P}_tag_ok
        s_cmp_lt_u32 s62, {SPIN_MAX}
        s_cbranch_scc1 {P}_tag_spin
        {P}_tag_ok:
        v_mov_b32 v12, {LDS_NONCE}
        ds_write_b64 v12, v[14:15]
        """)
    def comp_pre():
        wg_roles(a)
        a(f"""
        s_cmp_lg_u32 s{sWAVE}, 0
        s_cbranch_scc1 {P}_cp1
        """)
        if OPT['codepf']:
            a.c("pull this kernel's code into L2 (each workgroup a slice)")
            a(f"""
            s_getpc_b64 s[58:59]
            {P}_pc:
            s_lshr_b32 s60, s2, 3
            s_lshl_b32 s60, s60, 4
            v_and_b32 v12, 15, v1
            v_add_u32 v12, s60, v12
            v_lshlrev_b32 v12, 7, v12
            v_min_u32 v12, {P}_end-{P}_pc, v12
            v_mov_b32 v13, s59
            v_add_co_u32 v12, vcc, s58, v12
            s_nop 1
            v_addc_co_u32 v13, vcc, 0, v13, vcc
            global_load_dword v200, v[12:13], off
            """)
        a(f"""
        s_cmp_lg_u32 s2, 0
        s_cbranch_scc1 {P}_cp1
        """)
        a.c("launch tag for the hand-off flags: never equal to a tag of an earlier launch")
        a(f"""
        s_load_dwordx2 s[68:69], s[0:1], {KA_DBG}
        s_memrealtime s[58:59]
        s_waitcnt lgkmcnt(0)
        s_or_b32 s58, s58, 1
        v_mov_b32 v12, 0
        v_mov_b32 v16, s58
        v_mov_b32 v17, s59
        s_mov_b64 exec, 1
        global_store_dwordx2 v12, v[16:17], s[68:69] sc1
        s_mov_b64 exec, -1
        {P}_cp1:
        """)
    k1.VSCALE = 2.0 ** VS_LOG2
    k1.phase1(a, P, "sc1", None, loader_mid, loader_post, comp_pre)
    stamp(a, 4)
    a(f"""
    v_and_b32 v{vOFF}, 63, v0
    v_mov_b32 v12, {LDS_NONCE}
    s_waitcnt vmcnt(0) lgkmcnt(0)
    s_barrier
    """)
    stamp(a, 5)
    a(f"""
    ds_read_b64 v[14:15], v12
    s_lshl_b32 s58, s{sJ}, 2
    s_add_u32 s58, s58, s{sXCD}
    s_lshl_b32 s58, s58, 4
    s_add_u32 s58, s58, s{sI}
    s_lshl_b32 s58, s58, 7
    s_add_u32 s58, s58, {WS_F1}
    v_min_u32 v12, 47, v{vOFF}
    s_waitcnt lgkmcnt(0)
    v_readfirstlane_b32 s{sN}, v14
    v_readfirstlane_b32 s{sN+1}, v15
    s_cmp_lg_u32 s{sWAVE}, 7
    s_cbranch_scc1 {P}_h1a
    v_mov_b32 v13, 0
    s_mov_b64 exec, 1
    buffer_store_dwordx2 v[14:15], v13, s[{sWS}:{sWS+3}], s58 offen sc1
    s_mov_b64 exec, -1
    {P}_h1a:
    v_lshlrev_b32 v{vOFF}, 4, v{vOFF}
    v_mov_b32 v{vIDX}, 0xdddd
    """)
    attn.addr_setup(a)
    a(f"""
    s_lshl_b32 s{sM0}, s{sWAVE}, 10
    s_lshl_b32 s{sKVO}, s{sHEAD}, 16
    s_add_u32 s{sKVO}, s{sKVO}, s{sM0}
    s_lshl_b32 s{sRUN}, s{sQB}, 13
    s_add_u32 s59, s{sKVO}, s{sRUN}
    s_add_u32 s{sKVO}, s{sKVO}, {WS_KF}
    s_cmp_lg_u32 s{sWAVE}, 6
    s_cbranch_scc1 {P}_h1_ok
    s_lshr_b32 s58, s{sHEAD}, 3
    s_lshl_b32 s58, s58, 13
    s_add_u32 s58, s58, {WS_F1}
    v_lshlrev_b32 v12, 7, v12
    """)
    poll(a, P, "h1", 12, 14, "s58")
    a("s_barrier")
    stamp(a, 6)
    a(f"buffer_load_dwordx4 {vr(vQ,4)}, v{vOFF}, s[{sWS}:{sWS+3}], s59 offen sc1")
    for c in range(2):
        k, v = kv_dma(c)
        for x in k + v: a(x)
    a.c("role set-up while the loads fly")
    a(f"""
    s_load_dwordx2 s[{sOUT}:{sOUT+1}], s[0:1], {KA_OUT}
    s_mov_b32 s{sOUT+2}, 0x400000
    s_mov_b32 s{sOUT+3}, 0x20000
    s_cmp_lt_u32 s{sWAVE}, 4
    s_cbranch_scc1 {P}_suA
    v_and_b32 v24, 31, v0
    v_bfe_u32 v25, v0, 5, 1
    s_lshl_b32 s58, s{sJJ}, 5
    v_add_u32 v24, s58, v24                 ; 32J+n
    v_sub_u32 v26, 0x100, v24
    v_sub_u32 v27, 0xff, v24
    s_cmp_ge_u32 s{sJJ}, 4
    s_cselect_b64 vcc, -1, 0
    v_cndmask_b32 v26, v24, v26, vcc
    v_cndmask_b32 v27, v24, v27, vcc
    v_and_b32 v28, 0x7f, v26
    v_cmp_eq_u32 vcc, 0, v28
    v_mul_u32_u24 v25, {G_CS}, v25
    v_lshl_add_u32 v184, v26, 4, v25
    v_lshl_add_u32 v186, v27, 4, v25
    v_add_u32 v186, {G_PS}, v186
    v_mov_b32 v28, 0x40000000
    v_cndmask_b32 v185, v184, v28, vcc
    v_subrev_u32 v187, 0x100, v0
    v_lshlrev_b32 v187, 7, v187
    v_add_u32 v187, {WS_F1}, v187
    s_mul_i32 s63, s{sSLOT}, {G_SS}
    s_bfe_u32 s58, s{sWAVE}, 0x10001        ; kh
    s_mul_i32 s58, s58, {8*G_CS}
    s_add_u32 s63, s63, s58
    s_add_u32 s63, s63, {WS_G}
    s_branch {P}_suD
    {P}_suA:
    v_mov_b32 v184, 0
    v_mov_b32 v185, 0
    v_mov_b32 v186, 0
    v_mov_b32 v187, 0
    s_and_b32 s63, s{sHEAD}, 3
    s_lshl_b32 s63, s63, 2
    s_add_u32 s63, s63, s{sWAVE}            ; n tile
    s_lshl_b32 s63, s63, 15
    s_add_u32 s63, s63, {WS_WOF}
    s_lshl_b32 s64, s{sWAVE}, 13
    {P}_suD:
    """)
    for i in range(16): a(f"v_mov_b32 v{vO+i}, 0")
    a("s_waitcnt vmcnt(2) lgkmcnt(0)\ns_barrier")
    stamp(a, 7)
    a(f"""
    ds_read_b128 {vr(vK,4)}, v{vKA}
    ds_read_b128 {vr(vV1,4)}, v{vKA} offset:1024
    ds_read_b128 {vr(vV0,4)}, v{vVA}
    s_waitcnt lgkmcnt(2)
    v_mfma_f32_32x32x16_bf16 {vr(vS[0],16)}, {vr(vK,4)}, {vr(vQ,4)}, 0
    s_waitcnt lgkmcnt(1)
    v_mfma_f32_32x32x16_bf16 {vr(vS[1],16)}, {vr(vV1,4)}, {vr(vQ,4)}, 0
    s_nop 10
    """)
    attn.max16(a, vT0, vS[0], True)
    attn.max16(a, vT0, vS[1], False)
    attn.set_c(a, SHIFT)
    a(f"""
    s_nop 1
    v_mfma_f32_32x32x16_bf16 {vr(vS[0],16)}, {vr(vK,4)}, {vr(vQ,4)}, {vr(vC,16)}
    ds_read_b128 {vr(vK,4)}, v{vKA} offset:1024
    s_mov_b32 s65, 0
    s_cmp_lt_u32 s{sWAVE}, 4
    s_nop 7
    s_cbranch_scc0 {P}_roleB
    """)
    attn_role(a, P, 'A')
    a(f".p2align 6\n{P}_roleB:")
    attn_role(a, P, 'B')
    a.c("fallback pass (true row max)")
    a(f".p2align 6\n{P}_loop:")
    attn.iteration(a, 6)
    a(f"""
    s_sub_u32 s66, s66, 1
    s_cmp_lg_u32 s66, 0
    s_cbranch_scc1 {P}_loop
    {P}_attn_done:
    s_waitcnt lgkmcnt(0)
    v_smfmac_f32_32x32x32_bf16 {vr(vO,16)}, {vr(vV1,4)}, {vr(vS[1]+8,8)}, v{vIDX}
    s_lshl_b32 s58, s{sQB}, 3
    s_add_u32 s58, s58, s{sWAVE}
    s_lshl_b32 s58, s58, 5
    s_add_u32 s58, s58, s{sHEAD}
    s_lshl_b32 s59, s58, 7
    s_add_u32 s59, s59, {WS_F2}
    s_lshl_b32 s58, s58, 10
    s_add_u32 s58, s58, {WS_OF}
    s_cmp_lg_u32 s65, 0
    s_nop 2
    s_cbranch_scc1 {P}_fin
    """)
    a.c("run-time check of the max stand-in: row sum below 2^120 and all accumulators finite")
    a(f"v_add_f32 v{vT0}, abs(v{vO}), abs(v{vO+1})")
    for i in range(2, 8): a(f"v_add_f32 v{vT0}, v{vT0}, abs(v{vO+i})")
    a(f"""
    v_mov_b32 v{vT1}, 0x7b800000
    v_cmp_nlt_f32 vcc, v{vO+8}, v{vT1}
    v_mov_b32 v{vT1}, 0x7f000000
    v_cmp_nlt_f32 s[60:61], v{vT0}, v{vT1}
    s_nop 1
    s_or_b64 vcc, vcc, s[60:61]
    s_cbranch_scc0 {P}_fin
    """)
    attn.addr_setup(a)
    a(f"""
    v_mov_b32 v{vT0}, 0xff800000
    s_movk_i32 s66, 64
    {P}_maxloop:
    ds_read_b128 {vr(vK,4)}, v{vKA}
    v_add_u32 v{vKA}, 0x400, v{vKA}
    s_waitcnt lgkmcnt(0)
    v_mfma_f32_32x32x16_bf16 {vr(vS[0],16)}, {vr(vK,4)}, {vr(vQ,4)}, 0
    s_nop 12
    """)
    attn.max16(a, vT0, vS[0], False)
    a(f"""
    s_sub_u32 s66, s66, 1
    s_cmp_lg_u32 s66, 0
    s_cbranch_scc1 {P}_maxloop
    """)
    attn.set_c(a, 0.0)
    a(f"v_mov_b32 v{vKA}, v{vOFF}")
    attn.prime(a)
    a(f"""
    s_mov_b32 s65, 1
    s_movk_i32 s66, 8
    s_branch {P}_loop
    {P}_fin:
    v_rcp_f32 v{vT0}, v{vO+8}
    s_nop 0
    """)
    for i in range(8): a(f"v_mul_f32 v{vO+i}, v{vO+i}, v{vT0}")
    for i in range(4): a(f"v_cvt_pk_bf16_f32 v{vO+i}, v{vO+2*i}, v{vO+2*i+1}")
    a(f"buffer_store_dwordx4 {vr(vO,4)}, v{vOFF}, s[{sWS}:{sWS+3}], s58 offen sc1")
    stamp(a, 8)
    a(f"""
    v_mov_b32 v8, s{sN}
    v_mov_b32 v9, s{sN+1}
    v_mov_b32 v10, 0
    v_and_b32 v2, 31, v0
    v_bfe_u32 v3, v0, 5, 1
    s_cmp_lt_u32 s{sWAVE}, 4
    s_cbranch_scc1 {P}_tailA
    """)
    ACC = 24
    a("s_waitcnt vmcnt(1)")
    for kq in range(4):
        for ty in range(2):
            for par in range(2):
                i = 4*kq + 2*ty + par
                c = "0" if kq == 0 and ty == 0 else vr(ACC+16*par,16)
                a(f"v_mfma_f32_32x32x16_bf16 {vr(ACC+16*par,16)}, {vr(vTW+8*kq+4*ty,4)}, {vr(vG+4*i,4)}, {c}")
    a(f"""
    s_sub_u32 s60, s{sWAVE}, 4
    s_lshl_b32 s61, s60, 12
    s_add_u32 s61, s61, {LDS_XB}
    v_add_u32 v11, s61, v{vOFF}
    s_xor_b32 s61, s60, 2
    s_lshl_b32 s61, s61, 12
    s_add_u32 s61, s61, {LDS_XB}
    v_add_u32 v12, s61, v{vOFF}
    v_lshlrev_b32 v4, 2, v2
    v_lshl_add_u32 v4, v3, 18, v4
    s_and_b32 s61, s60, 1
    s_lshl_b32 s61, s61, 1
    s_lshr_b32 s60, s60, 1
    s_add_u32 s61, s61, s60
    s_lshl_b32 s61, s61, 9
    s_add_u32 s61, s61, s{sR}
    s_lshl_b32 s61, s61, 11
    s_lshl_b32 s60, s{sJJ}, 7
    s_add_u32 s61, s61, s60
    """)
    for q in range(4):
        a(f"ds_write_b128 v11, {vr(ACC + 16*(q>>1) + 8 + 4*(q&1), 4)} offset:{q*1024}")
    a(f"""
    s_waitcnt vmcnt(0)
    s_mov_b64 exec, 1
    buffer_store_dwordx2 v[8:9], v10, s[{sWS}:{sWS+3}], s59 offen sc1
    s_mov_b64 exec, -1
    s_waitcnt lgkmcnt(0)
    s_barrier
    """)
    for q in range(4): a(f"ds_read_b128 {vr(56 + 4*q, 4)}, v12 offset:{q*1024}")
    a("s_waitcnt lgkmcnt(0)")
    for r in range(8):
        a(f"v_add_f32 v{ACC+r}, v{ACC+r}, v{56+r}")
        a(f"v_add_f32 v{ACC+16+r}, v{ACC+16+r}, v{64+r}")
        a(f"v_cvt_pk_bf16_f32 v{72+r}, v{ACC+r}, v{ACC+16+r}")
        a(f"s_add_u32 s60, s61, {(8*(r//4) + r%4) * 32 * 2048}")
        a(f"buffer_store_dword v{72+r}, v4, s[{sOUT}:{sOUT+3}], s60 offen")
    a(f"s_branch {P}_done")
    a(f"""
    {P}_tailA:
    s_lshl_b32 s60, s{sQB}, 3
    s_lshr_b32 s61, s{sHEAD}, 2
    s_add_u32 s60, s60, s61
    s_lshl_b32 s61, s60, 5
    s_lshl_b32 s63, s{sWAVE}, 3
    s_add_u32 s61, s61, s63
    s_lshl_b32 s63, s61, 10
    s_add_u32 s63, s63, {WS_OF}
    s_lshl_b32 s61, s61, 7
    s_add_u32 s61, s61, {WS_F2}
    v_and_b32 v11, 7, v0
    v_lshlrev_b32 v11, 7, v11
    s_lshl_b32 s64, s{sWAVE}, 13
    v_add_u32 v12, s64, v{vOFF}
    """)
    for g in range(1, 4): a(f"v_add_u32 v{12+g}, 0x2000, v{11+g}\nv_and_b32 v{12+g}, 0x7fff, v{12+g}")
    a(f"""
    s_waitcnt vmcnt(0)
    s_mov_b64 exec, 1
    buffer_store_dwordx2 v[8:9], v10, s[{sWS}:{sWS+3}], s59 offen sc1
    s_mov_b64 exec, -1
    s_barrier
    """)
    stamp(a, 9)
    poll(a, P, "h2", 11, 16, "s61")
    stamp(a, 10)
    a(f"s_mov_b32 m0, s64\ns_nop 0")
    for i in range(4): a(f"buffer_load_dwordx4 v{vOFF}, s[{sWS}:{sWS+3}], s63 offen offset:{i*1024} sc1 lds")
    a(f"s_add_u32 m0, s64, 4096\ns_add_u32 s63, s63, 4096")
    for i in range(4): a(f"buffer_load_dwordx4 v{vOFF}, s[{sWS}:{sWS+3}], s63 offen offset:{i*1024} sc1 lds")
    a(f"""
    v_lshlrev_b32 v4, 11, v2
    v_lshl_add_u32 v4, v3, 5, v4
    s_lshl_b32 s60, s60, 16
    s_and_b32 s61, s{sHEAD}, 3
    s_lshl_b32 s61, s61, 2
    s_add_u32 s61, s61, s{sWAVE}
    s_lshl_b32 s61, s61, 6
    s_add_u32 s60, s60, s61
    s_add_u32 s60, s60, 1024
    s_waitcnt vmcnt(0)
    s_barrier
    """)
    stamp(a, 11)
    F0, ACC = 40, 24
    NB = 8
    rd = lambda i: a(f"ds_read_b128 {vr(F0+4*(i%NB),4)}, v{12+i//8} offset:{(i%8)*1024}")
    for i in range(NB): rd(i)
    for i in range(32):
        a(f"s_waitcnt lgkmcnt({min(NB-1, 31-i)})")
        a(f"v_mfma_f32_32x32x16_bf16 {vr(ACC,16)}, {vr(vWO+4*i,4)}, {vr(F0+4*(i%NB),4)}, {'0' if i == 0 else vr(ACC,16)}")
        if i + NB < 32: rd(i + NB)
    a("s_nop 11")
    for i in range(8): a(f"v_cvt_pk_bf16_f32 v{F0+i}, v{ACC+2*i}, v{ACC+2*i+1}")
    a(f"buffer_store_dwordx4 {vr(F0,4)}, v4, s[{sOUT}:{sOUT+3}], s60 offen")
    a(f"buffer_store_dwordx4 {vr(F0+4,4)}, v4, s[{sOUT}:{sOUT+3}], s60 offen offset:16")
    stamp(a, 12)
    a(f"{P}_done:")
    stamp_flush(a, 0)
    a(f"{P}_end:\ns_endpgm")
    return kernel_header(name) + a.text() + kernel_desc(name, VGPRS)

def header():
    ref = open(f"cdna_kernels/{NAME}.s.ref").read().split("\n")
    return "\n".join(l for l in ref if l.startswith(";") and "@launch" not in l and "Override" not in l and "grid=ceil" not in l) + "\n"
def gen(aslist=True):
    s = header()
    if aslist: s += f"; @launch kernel={NAME}_kernel grid=(256,1,1) block=(512,1,1) lds={LDS_BYTES}\n"
    else: s += f"; @launch grid=(256,1,1) block=(512,1,1) lds={LDS_BYTES}\n"
    s += '.amdgcn_target "amdgcn-amd-amdhsa--gfx950"\n'
    return s + gen_kernel(NAME + "_kernel")
if __name__ == "__main__":
    open(f"fused.s", "w").write(gen(False))
    open(f"fused_list.s", "w").write(gen(True))
```

```python
class Asm:
    def __init__(self):
        self.lines = []
    def __call__(self, s=""):
        for l in s.split("\n"):
            l = l.strip()
            if not l: continue
            if l.endswith(":") or l.startswith("."):
                self.lines.append(l)
            else:
                self.lines.append("    " + l)
    def c(self, s):
        self.lines.append("    ; " + s)
    def text(self):
        return "\n".join(self.lines) + "\n"

def vr(a, n):
    return f"v[{a}:{a+n-1}]" if n > 1 else f"v{a}"
def sr(a, n):
    return f"s[{a}:{a+n-1}]" if n > 1 else f"s{a}"

def kernel_header(name):
    return f""".text
.globl {name}
.p2align 8
.type {name},@function
{name}:
"""
def kernel_desc(name, vgpr, sgpr=96, accum=None):
    if accum is None: accum = (vgpr + 3) // 4 * 4
    return f""".section .rodata,"a"
.p2align 6
.amdhsa_kernel {name}
  .amdhsa_next_free_vgpr {vgpr}
  .amdhsa_next_free_sgpr {sgpr}
  .amdhsa_accum_offset {accum}
  .amdhsa_group_segment_fixed_size 0
  .amdhsa_kernarg_size 88
  .amdhsa_user_sgpr_count 2
  .amdhsa_user_sgpr_kernarg_segment_ptr 1
  .amdhsa_system_sgpr_workgroup_id_x 1
  .amdhsa_float_denorm_mode_32 3
.end_amdhsa_kernel
"""
KA_AX, KA_SRE, KA_SIM, KA_HRE, KA_HIM, KA_BX, KA_WQKV, KA_WO, KA_OUT, KA_DBG, KA_WS = [8*i for i in range(11)]
WS_QF = 0x000000
WS_KF = 0x200000
WS_VF = 0x400000
WS_OF = 0x600000
WS_G  = 0x800000
WS_TW = 0xC00000
WS_WOF = 0xC00000
WS_F1 = 0xD00000
WS_F2 = 0xD40000
WS_FL = 0xD80000
WS_FG = 0xDA0000
WS_CEN = 0xDC0000
WS_FAR = 0x1000000
WS_STAMP = 0xE00000
WS_BYTES = 0x1600000

STAMPS = False
STAMP_INS = 's_memrealtime'
NST = 16
def stamp(a, i):
    if STAMPS: a(f"{STAMP_INS} s[74:75]\ns_waitcnt lgkmcnt(0)\ns_mov_b32 s{76+i}, s74")
def stamp_init(a):
    if STAMPS:
        stamp(a, 0)
        for i in range(1, NST): a(f"s_mov_b32 s{76+i}, 0")
def stamp_flush(a, kid):
    if not STAMPS: return
    a("s_waitcnt vmcnt(0)")
    stamp(a, NST - 1)
    a(f"""
    s_load_dwordx2 s[92:93], s[0:1], {KA_WS}
    v_lshrrev_b32 v1, 6, v0
    s_mov_b32 s94, {WS_BYTES}
    s_mov_b32 s95, 0x20000
    v_readfirstlane_b32 s3, v1
    s_lshl_b32 s4, s2, 3
    s_add_u32 s4, s4, s3
    s_lshl_b32 s4, s4, 6
    s_add_u32 s4, s4, {WS_STAMP + kid * 0x20000}
    s_waitcnt lgkmcnt(0)
    """)
    for i in range(NST): a(f"v_mov_b32 v{8+i}, s{76+i}")
    a("v_mov_b32 v1, 0")
    for i in range(4): a(f"buffer_store_dwordx4 v[{8+4*i}:{11+4*i}], v1, s[92:95], s4 offen offset:{16*i}")
```

```python
from asmlib import *
import struct, math
def f32bits(x): return struct.unpack("<I", struct.pack("<f", x))[0]

G_PS = 136 * 16
G_CS = 2 * G_PS
G_SS = 16 * G_CS
G_TS = 16 * G_SS
K1_LDS = 131072
LX, LW = 0, 65536
QSCALE = 0.25 * math.log2(math.e)
VSCALE = 1.0

sWAVE, sXCD, sI, sJ, sROT = 8, 9, 10, 11, 12
sFL, sCLS = 14, 15
sST, vST, vSA = 36, 144, 176
sX, sW, sWS = 16, 20, 24
K1_VGPR = 144
MIDPOS = 0
ROT = 8
MAP = 0
NST = ''
RC = (1, 1, 0, 7)

def gemm_loop(a, P, mode, hooks={}):
    vXA, vWA, F0, ACC = 4, 8, 16, 64
    if mode == 'f':
        nx, setsz = 4, 20
    else:
        nx, setsz = 2, 16
    def reads(slot, ks, st):
        base = F0 + st * setsz
        r = []
        if mode == 'f':
            r.append(f"ds_read_b128 {vr(base+16,4)}, v{vWA+ks} offset:{slot*16384}")
            for t in range(4): r.append(f"ds_read_b128 {vr(base+4*t,4)}, v{vXA+ks} offset:{slot*16384+t*4096}")
        else:
            r.append(f"ds_read_b128 {vr(base,4)}, v{vXA+ks} offset:{slot*16384}")
            for z in range(2): r.append(f"ds_read_b64_tr_b16 {vr(base+8+2*z,2)}, v{vWA} offset:{slot*16384+ks*4096+z*1024}")
            for z in range(2): r.append(f"ds_read_b64_tr_b16 {vr(base+12+2*z,2)}, v{vWA+1} offset:{slot*16384+ks*4096+z*1024}")
            r.append(f"ds_read_b128 {vr(base+4,4)}, v{vXA+ks} offset:{slot*16384+4096}")
        return r
    def mfmas(st, first):
        base = F0 + st * setsz
        m = []
        if mode == 'f':
            for t in range(4):
                c = "0" if first else vr(ACC+16*t,16)
                m.append(f"v_mfma_f32_32x32x16_bf16 {vr(ACC+16*t,16)}, {vr(base+4*t,4)}, {vr(base+16,4)}, {c}")
        else:
            for (x, w) in ((0,0),(0,1),(1,0),(1,1)):
                t = 2*x + w
                c = "0" if first else vr(ACC+16*t,16)
                X, W = vr(base+4*x,4), vr(base+8+4*w,4)
                A, B = (W, X) if mode == 'qk' else (X, W)
                m.append(f"v_mfma_f32_32x32x16_bf16 {vr(ACC+16*t,16)}, {A}, {B}, {c}")
        return m
    stamp(a, 1)
    a("s_barrier")
    stamp(a, 2)
    for r in reads(0, 0, 0): a(r)
    steps = [(c, ks) for c in range(8) for ks in range(4)]
    for n, (c, ks) in enumerate(steps):
        st = n & 1
        a("s_waitcnt lgkmcnt(0)")
        nxt = steps[n+1] if n + 1 < len(steps) else None
        if nxt and nxt[1] == 0: a("s_barrier")
        rd = reads(nxt[0] & 3, nxt[1], st ^ 1) if nxt else []
        m = mfmas(st, n == 0)
        split = [3, 3, 0, 0] if len(rd) == 6 else [2, 2, 1, 0]
        for i in range(4):
            a(m[i])
            for _ in range(split[i]):
                if rd: a(rd.pop(0))
            if i == 2 and n in hooks: hooks[n](mode)
    stamp(a, 3)

def p1store(n):
    return f"buffer_store_dwordx4 {vr(vST+4*n,4)}, v{vSA}, s[{sWS}:{sWS+3}], s{sST+n} offen sc1"

def lane_consts(a):
    a("""
    v_and_b32 v1, 63, v0
    v_and_b32 v2, 31, v0
    v_bfe_u32 v3, v0, 5, 1
    """)

def xaddr(a, dst, rowreg, base, tmp):
    a(f"""
    v_bfe_u32 v{tmp}, v{rowreg}, 1, 3
    v_xor_b32 v{tmp}, v{tmp}, v3
    v_lshlrev_b32 v{tmp}, 4, v{tmp}
    v_lshl_add_u32 v{dst}, v{rowreg}, 7, v{tmp}
    """)
    if base: a(f"v_add_u32 v{dst}, {base}, v{dst}")
    for ks in range(1, 4): a(f"v_xor_b32 v{dst+ks}, {ks*32}, v{dst}")

def phase1(a, P, store_flags="", loader_pre=None, loader_mid=None, loader_post=None, comp_pre=None, hooks={}, loader_late=None, qkv_post=None):
    a(f"""
    s_load_dwordx2 s[{sWS}:{sWS+1}], s[0:1], {KA_WS}
    v_lshrrev_b32 v1, 6, v0
    s_and_b32 s{sXCD}, s2, 7
    v_readfirstlane_b32 s{sWAVE}, v1
    s_lshr_b32 s3, s2, 3
    """)
    ca, cb, cc, cd, msk, cf = RC
    a(f"""
    s_lshr_b32 s5, s{sXCD}, 1
    s_and_b32 s4, s3, 3
    s_lshl_b32 s{sI}, s5, 2
    s_add_u32 s{sI}, s{sI}, s4
    s_mul_i32 s{sROT}, s4, {ca}
    s_mul_i32 s5, s5, {cc}
    s_add_u32 s{sROT}, s{sROT}, s5
    s_lshr_b32 s4, s3, 2
    s_mul_i32 s5, s4, {cb}
    s_add_u32 s{sROT}, s{sROT}, s5
    s_and_b32 s5, s{sXCD}, 1
    s_and_b32 s4, s4, 1
    s_lshl_b32 s{sJ}, s5, 1
    s_add_u32 s{sJ}, s{sJ}, s4
    s_cmp_ge_u32 s3, 24
    s_cselect_b32 s4, {cf}, {cd}
    s_mul_i32 s5, s5, s4
    s_add_u32 s{sROT}, s{sROT}, s5
    s_and_b32 s{sROT}, s{sROT}, {msk}
    s_lshr_b32 s{sXCD}, s3, 3
    """)
    a(f"""
    s_mov_b32 s{sWS+2}, {WS_BYTES}
    s_mov_b32 s{sWS+3}, 0x20000
    s_mov_b32 s{sX+2}, 0x200000
    s_mov_b32 s{sX+3}, 0x20000
    s_mov_b32 s{sW+3}, 0x20000
    """)
    lane_consts(a)
    a(f"""
    s_cmp_lt_u32 s{sWAVE}, 4
    s_cbranch_scc1 {P}_comp
    """)
    sLW, sXO, sWO, sXQ, sWQ, sWC, sM, sCH = 13, 28, 29, 30, 31, 32, 33, 34
    a(f"""
    s_sub_u32 s{sLW}, s{sWAVE}, 4
    v_lshrrev_b32 v4, 3, v1
    v_and_b32 v5, 7, v1
    v_lshrrev_b32 v6, 4, v1
    v_xor_b32 v5, v5, v6
    v_lshlrev_b32 v5, 4, v5
    s_mov_b64 s[36:37], -1
    s_cmp_eq_u32 s{sXCD}, 3
    s_cbranch_scc1 {P}_ldf
    s_load_dwordx2 s[{sX}:{sX+1}], s[0:1], {KA_BX}
    s_load_dwordx2 s[{sW}:{sW+1}], s[0:1], {KA_WQKV}
    s_mov_b32 s{sW+2}, {512*3072}
    v_lshl_add_u32 v8, v4, 10, v5
    v_xor_b32 v9, 64, v8
    v_and_b32 v7, 15, v1
    v_lshlrev_b32 v10, 2, v6
    v_xor_b32 v7, v7, v10
    v_lshlrev_b32 v7, 4, v7
    v_mul_u32_u24 v10, 3072, v6
    v_add_u32 v10, v10, v7
    v_mov_b32 v11, v10
    s_lshl_b32 s{sXO}, s{sI}, 17
    s_lshl_b32 s3, s{sLW}, 15
    s_add_u32 s{sXO}, s{sXO}, s3
    s_movk_i32 s{sXQ}, 0x2000
    s_lshl_b32 s{sWO}, s{sXCD}, 2
    s_add_u32 s{sWO}, s{sWO}, s{sJ}
    s_lshl_b32 s{sWO}, s{sWO}, 8
    s_mul_i32 s3, s{sLW}, {16*3072}
    s_add_u32 s{sWO}, s{sWO}, s3
    s_movk_i32 s{sWQ}, {4*3072}
    s_mov_b32 s{sWC}, {64*3072}
    s_branch {P}_ldgo
    {P}_ldf:
    s_load_dwordx2 s[{sX}:{sX+1}], s[0:1], {KA_AX}
    s_lshr_b32 s3, s{sJ}, 1
    s_lshl_b32 s3, s3, 3
    s_add_u32 s3, s3, {KA_HRE}
    s_load_dwordx2 s[{sW}:{sW+1}], s[0:1], s3
    s_mov_b32 s{sW+2}, {512*1024}
    v_lshl_add_u32 v8, v4, 16, v5
    v_xor_b32 v9, 64, v8
    v_lshl_add_u32 v10, v4, 11, v5
    v_xor_b32 v11, 64, v10
    s_lshl_b32 s{sXO}, s{sI}, 2
    s_add_u32 s{sXO}, s{sXO}, s{sLW}
    s_lshl_b32 s{sXO}, s{sXO}, 10
    s_mov_b32 s{sXQ}, 0x80000
    s_and_b32 s{sWO}, s{sJ}, 1
    s_lshl_b32 s{sWO}, s{sWO}, 10
    s_lshl_b32 s3, s{sLW}, 16
    s_add_u32 s{sWO}, s{sWO}, s3
    s_movk_i32 s{sWQ}, 0x4000
    s_movk_i32 s{sWC}, 128
    s_lshl_b32 s3, s{sLW}, 4
    s_add_u32 s3, s3, s{sJ}
    s_cmp_eq_u32 s3, 2
    s_cbranch_scc0 {P}_ldgo
    s_mov_b32 s36, 0xffffff00
    v_mov_b32 v12, 0xbf803f80
    v_lshlrev_b32 v13, 2, v2
    v_lshl_add_u32 v13, v3, 14, v13
    v_add_u32 v13, {LW}, v13
    ds_write_b32 v13, v12
    ds_write_b32 v13, v12 offset:32768
    {P}_ldgo:
    s_lshl_b32 s{sM}, s{sLW}, 12
    s_mov_b32 s{sCH}, s{sROT}
    s_waitcnt lgkmcnt(0)
    """)
    def issue(n):
        slot = n & 3
        a(f"""
        s_lshl_b32 s38, s{sCH}, 7
        s_add_u32 s38, s38, s{sXO}
        s_mul_i32 s39, s{sCH}, s{sWC}
        s_add_u32 s39, s39, s{sWO}
        s_xor_b32 s{sCH}, s{sROT}, {(n + 1) & 7}
        """)
        for q in range(4):
            a(f"s_add_u32 m0, s{sM}, {LX + slot*16384 + q*1024}")
            a("s_nop 0" if q == 0 else f"s_add_u32 s39, s39, s{sWQ}")
            a(f"buffer_load_dwordx4 v{8 + (q&1)}, s[{sX}:{sX+3}], s38 offen lds")
            a(f"s_add_u32 m0, s{sM}, {LW + slot*16384 + q*1024}")
            a(f"s_add_u32 s38, s38, s{sXQ}")
            if q == 0: a("s_mov_b64 exec, s[36:37]")
            a(f"buffer_load_dwordx4 v{10 + (q&1)}, s[{sW}:{sW+3}], s39 offen lds")
            if q == 0: a("s_mov_b64 exec, -1")
    if loader_pre: loader_pre(sLW)
    stamp(a, 13)
    issue(0)
    stamp(a, 14)
    if loader_mid and MIDPOS == 0: loader_mid(sLW)
    issue(1)
    for c in range(8):
        a(f"s_waitcnt vmcnt({(9 if c == 6 else 8) if c < 7 else 0})")
        a("s_barrier")
        if c + 2 < 8: issue(c + 2)
        if c == 5: loader_late()
        if loader_mid and MIDPOS == c + 1: loader_mid(sLW)
    if loader_post:
        loader_post(sLW)
    a(f"""
    {P}_comp:
    """)
    if comp_pre: comp_pre()
    a(f"""
    s_cmp_eq_u32 s{sXCD}, 3
    s_cbranch_scc1 {P}_cf
    s_and_b32 s28, s{sWAVE}, 1              ; wm
    s_lshr_b32 s29, s{sWAVE}, 1             ; wn
    """)
    a.c("W (tr) addresses")
    a(f"""
    v_bfe_u32 v12, v1, 2, 2                 ; r
    s_lshl_b32 s3, s29, 1
    v_xor_b32 v13, s3, v12
    v_lshlrev_b32 v13, 6, v13
    v_lshl_add_u32 v13, v12, 8, v13         ; r*256 + blk*64
    v_lshl_add_u32 v13, v3, 11, v13         ; + 8h rows
    v_bfe_u32 v14, v1, 4, 1
    v_lshl_add_u32 v13, v14, 5, v13
    v_and_b32 v14, 3, v1
    v_lshl_add_u32 v13, v14, 3, v13
    v_add_u32 v8, {LW}, v13
    v_xor_b32 v9, 64, v8
    s_lshl_b32 s3, s28, 6
    s_lshl_b32 s30, s{sJ}, 3
    s_lshl_b32 s31, s29, 2
    s_add_u32 s30, s30, s31
    s_lshl_b32 s30, s30, 13
    s_lshl_b32 s31, s{sXCD}, 21
    s_add_u32 s30, s30, s31
    s_and_b32 s31, s{sI}, 3
    s_lshl_b32 s32, s28, 2
    s_add_u32 s31, s31, s32
    s_lshr_b32 s32, s{sI}, 2
    s_lshr_b32 s{sCLS}, s31, 1
    s_min_u32 s{sCLS}, s{sCLS}, 2
    s_lshr_b32 s33, s{sI}, 1                ; Q: q block
    s_lshl_b32 s34, s{sI}, 1
    s_and_b32 s34, s34, 2
    s_add_u32 s34, s34, s28
    s_cmp_eq_u32 s{sXCD}, 0
    s_cselect_b32 s31, s33, s31
    s_cselect_b32 s32, s34, s32
    s_cselect_b32 s{sCLS}, 0, s{sCLS}
    s_lshl_b32 s31, s31, 18
    s_lshl_b32 s32, s32, 11
    s_add_u32 s30, s30, s31
    s_add_u32 s{sST}, s30, s32
    s_cmp_eq_u32 s{sXCD}, 2
    s_cselect_b32 s31, 512, 0
    s_cselect_b32 s32, 0, 0x2000
    s_add_u32 s31, s31, s32                 ; z stride
    s_xor_b32 s{sST+2}, s{sST}, 0x5000
    s_add_u32 s{sST+1}, s{sST}, s31
    s_add_u32 s{sST+3}, s{sST+2}, s31
    s_add_u32 s{sST+4}, s{sST}, 1024
    s_add_u32 s{sST+5}, s{sST+1}, 1024
    s_add_u32 s{sST+6}, s{sST+2}, 1024
    s_add_u32 s{sST+7}, s{sST+3}, 1024
    s_lshl_b32 s32, s{sXCD}, 4
    s_add_u32 s32, s32, s{sI}
    s_lshl_b32 s32, s32, 1
    s_add_u32 s32, s32, s28
    s_lshl_b32 s32, s32, 2
    s_add_u32 s32, s32, s{sJ}
    s_lshl_b32 s32, s32, 1
    s_add_u32 s32, s32, s29
    s_lshl_b32 s32, s32, 7
    s_add_u32 s{sFL}, s32, {WS_FL}
    s_cmp_eq_u32 s{sXCD}, 2
    s_cbranch_scc1 {P}_cv
    v_add_u32 v12, s3, v2
    """)
    xaddr(a, 4, 12, LX, 13)
    a(f"""
    v_lshlrev_b32 v{vSA}, 4, v1
    s_cmp_eq_u32 s{sXCD}, 0
    s_cselect_b32 s32, {hex(f32bits(QSCALE))}, 1.0
    """)
    gemm_loop(a, P, 'qk', hooks)
    a(f"""
    s_branch {P}_epi
    {P}_cv:
    v_and_b32 v12, 0x13, v2
    v_bfe_u32 v13, v2, 2, 1
    v_lshl_add_u32 v12, v13, 3, v12
    v_bfe_u32 v13, v2, 3, 1
    v_lshl_add_u32 v12, v13, 2, v12
    v_add_u32 v12, s3, v12
    """)
    xaddr(a, 4, 12, LX, 13)
    a(f"""
    v_and_b32 v10, 15, v1
    v_lshlrev_b32 v10, 4, v10
    v_lshl_add_u32 v10, v3, 8, v10
    v_bfe_u32 v13, v1, 4, 1
    v_lshl_add_u32 v{vSA}, v13, 13, v10
    s_mov_b32 s32, {hex(f32bits(VSCALE))}
    """)
    gemm_loop(a, P, 'v', hooks)
    def epi(now):
        for x in range(2):
            for w in range(2):
                acc = 64 + 16 * (2*x + w)
                for z in range(2):
                    n = 4*x + 2*w + z
                    for i in range(0, 8, 2): a(f"v_pk_mul_f32 {vr(acc+8*z+i,2)}, {vr(acc+8*z+i,2)}, s[32:33]")
                    for i in range(4): a(f"v_cvt_pk_bf16_f32 v{vST+4*n+i}, v{acc+8*z+2*i}, v{acc+8*z+2*i+1}")
                    if now: a(p1store(n))
    a(f"""
    {P}_epi:
    s_mov_b32 s33, s32
    s_cmp_eq_u32 s{sCLS}, 0
    s_nop 5
    s_cbranch_scc0 {P}_epi_late
    """)
    epi(True)
    qkv_post()
    a(f"{P}_epi_late:")
    epi(False)
    a(f"s_barrier\ns_branch {P}_p1done")
    a(f"{P}_cf:")
    xaddr(a, 4, 2, LX, 13)
    a(f"s_lshl_b32 s3, s{sWAVE}, 5\nv_add_u32 v12, s3, v2")
    xaddr(a, 8, 12, LW, 13)
    a.c("real DFT-32 matrix fragments in v[128:135]")
    a(f"""
    v_bfe_u32 v13, v2, 2, 1                 ; h'
    v_lshlrev_b32 v13, 3, v13
    v_lshrrev_b32 v14, 3, v2                ; j
    v_lshl_add_u32 v13, v14, 1, v13
    v_bfe_u32 v14, v2, 1, 1
    v_add_u32 v13, v13, v14                 ; slot
    v_and_b32 v14, 1, v2                    ; comp
    v_cmp_eq_u32 vcc, 1, v2
    v_cvt_f32_u32 v14, v14
    v_mul_f32 v14, 0xbe800000, v14          ; phase -0.25
    v_cndmask_b32 v13, v13, 16, vcc
    v_cndmask_b32 v14, v14, 0, vcc
    v_cvt_f32_u32 v13, v13
    v_mul_f32 v13, {hex(f32bits(1/32))}, v13
    v_cvt_f32_u32 v15, v3
    v_mul_f32 v15, 4.0, v15
    v_fma_f32 v14, v15, v13, v14
    """)
    for kk in range(2):
        for s in range(0, 8, 2):
            for u in range(2):
                s1 = 16*kk + 8*((s+u)//4) + (s+u) % 4
                a(f"s_mov_b32 s3, {hex(f32bits(float(s1)))}")
                a(f"v_fma_f32 v{136+u}, s3, v13, v14")
                a(f"v_cos_f32 v{136+u}, v{136+u}")
            a("s_nop 0")
            a(f"v_cvt_pk_bf16_f32 v{128+4*kk+s//2}, v136, v137")
    a(f"""
    v_lshlrev_b32 v14, 4, v12               ; idx*16
    s_mov_b32 s3, {8*G_SS}
    v_mad_u32_u24 v14, v3, s3, v14
    s_lshr_b32 s28, s{sJ}, 1
    s_mul_i32 s28, s28, {G_TS}
    v_add_u32 v14, s28, v14
    s_cmp_eq_u32 s{sJ}, 2
    s_cselect_b32 s28, 0, -1
    v_cmp_eq_u32 vcc, s28, v12
    v_subrev_u32 v15, {G_TS - 128*16}, v14
    s_and_b32 s30, s{sJ}, 1
    v_cndmask_b32 v{vSA}, v14, v15, vcc
    s_mul_i32 s30, s30, {G_PS}
    s_mul_i32 s31, s{sI}, {G_CS}
    s_add_u32 s30, s30, s31
    s_mov_b32 s{sCLS}, 3
    """)
    for i in range(8): a(f"s_add_u32 s{sST+i}, s30, {WS_G + i*G_SS}")
    gemm_loop(a, P, 'f', hooks)
    a("s_barrier\ns_nop 8")
    for T in range(4):
        for i in range(8): a(f"v_cvt_pk_bf16_f32 v{16+8*T+i}, v{64+16*T+2*i}, v{64+16*T+2*i+1}")
    a("s_nop 1")
    for T in range(4): a(f"v_mfma_f32_32x32x16_bf16 {vr(64+16*T,16)}, v[128:131], {vr(16+8*T,4)}, 0")
    for T in range(4): a(f"v_mfma_f32_32x32x16_bf16 {vr(64+16*T,16)}, v[132:135], {vr(20+8*T,4)}, {vr(64+16*T,16)}")
    a("s_nop 11")
    for i in range(8):
        for T in range(4): a(f"v_cvt_pk_bf16_f32 v{vST+4*i+T}, v{64+16*T+2*i}, v{64+16*T+2*i+1}")
    a(f"{P}_p1done:")
```

```python
import sys
from asmlib import *
import asmlib, k1, attn
from k1 import f32bits, G_PS, G_CS, G_SS, G_TS, sWAVE, sWS, sXCD, sI, sJ, sFL, sCLS, p1store
from attn import vKA, vVA, vIDX, vVST, vT0, vT1, vOFF, vQ, vK, vV0, vV1, vS, vC, vO, LDS_K, LDS_V, LDS_ONES
NAME = "concat_heads__spectral_fnet__softmax_full_mha__prompt"
LDS_XB = LDS_ONES + 10240
LDS_BYTES = LDS_XB + 16384
VGPRS = 216
vTW, vG, vWO = 88, 120, 88
sN = 48
sHEAD, sQB, sR, sJJ, sSLOT = 50, 51, 52, 53, 54
sKVO, sRUN, sM0 = 55, 56, 57
sOUT = 20
SHIFT = 100.0
VS_LOG2 = 32
ONES = (127 + VS_LOG2) << 7
SPIN_MAX = 0x40000
OPT = dict(codepf=1, prio=1, midpos=0, rc=(1,1,0,0,3,0), h=(8, 20), b1=99, xp=1, wide=1, bx=14, oa='sc1', ob='nt', pfl='sc1', sfl='sc1', early=0, warm=1, pft=58, ts=(2, 4), ta=(5, 10), tc=(6, 9))
vTA, vTD = 203, 204

def wg_roles(a):
    a(f"""
    s_and_b32 s58, s2, 7
    s_lshr_b32 s59, s2, 3
    s_lshl_b32 s{sHEAD}, s58, 2
    s_and_b32 s60, s59, 3
    s_add_u32 s{sHEAD}, s{sHEAD}, s60       ; head
    s_lshr_b32 s{sQB}, s59, 2               ; q block
    s_mov_b32 s{sJJ}, s{sQB}
    s_lshl_b32 s{sSLOT}, s58, 1
    s_and_b32 s61, s60, 1
    s_add_u32 s{sSLOT}, s{sSLOT}, s61       ; slot
    s_sub_u32 s61, 32, s{sSLOT}
    s_cmp_eq_u32 s{sSLOT}, 0
    s_cselect_b32 s61, 16, s61
    s_cmp_lt_u32 s60, 2
    s_cselect_b32 s{sR}, s{sSLOT}, s61      ; residue r'
    s_load_dwordx2 s[68:69], s[0:1], {KA_DBG}
    v_mov_b32 v{vTA}, 0
    s_mov_b32 s{sFL}, 0
    """)

def tag_load(a):
    a(f"global_load_dwordx2 {vr(vTD,2)}, v{vTA}, s[68:69] sc1")

def tag_use(a, L):
    a(f"""
    s_mov_b32 s62, 0
    {L}_spin:
    s_waitcnt vmcnt(0)
    v_readfirstlane_b32 s{sN}, v{vTD}
    v_readfirstlane_b32 s{sN+1}, v{vTD+1}
    s_cmp_lg_u32 s{sN}, 0
    s_cbranch_scc1 {L}_ok
    """)
    tag_load(a)
    a(f"""
    s_add_u32 s62, s62, 1
    s_cmp_lt_u32 s62, {SPIN_MAX}
    s_cbranch_scc1 {L}_spin
    {L}_ok:
    """)

def poll(a, P, tag, vaddr, vd, soff, mask=None, fl='sc1'):
    a(f"""
    s_mov_b32 s62, 0
    {P}_{tag}_spin:
    buffer_load_dwordx2 {vr(vd,2)}, v{vaddr}, s[{sWS}:{sWS+3}], {soff} offen {OPT['pfl']}
    s_waitcnt vmcnt(0)
    v_cmp_ne_u64 vcc, s[{sN}:{sN+1}], {vr(vd,2)}
    s_add_u32 s62, s62, 1
    {f"s_and_b64 vcc, vcc, {mask}" if mask else ""}
    s_cbranch_vccz {P}_{tag}_ok
    s_cmp_lt_u32 s62, {SPIN_MAX}
    s_cbranch_scc1 {P}_{tag}_spin
    {P}_{tag}_ok:
    """)

def utile(a, t, ins, late=()):
    cur, nxt = vS[t & 1], vS[(t + 1) & 1]
    tt = t & 7
    e = lambda i: a(f"v_exp_f32 v{cur+i}, v{cur+i}")
    pq, p0 = (8, 12) if t in late else (5, 10)
    def extra(k):
        for x in ins.get(k, []): a(x)
    e(0); e(1)
    a("s_waitcnt lgkmcnt(0)")
    if t > 0: a(f"v_smfmac_f32_32x32x32_bf16 {vr(vO,16)}, {vr(vV1,4)}, {vr(nxt+8,8)}, v{vIDX}")
    if t in late: a(f"ds_read_b128 {vr(vK,4)}, v{vKA} offset:{(t+1)*1024}")
    a(f"ds_read_b128 {vr(vV1,4)}, v{vVA} offset:{tt*1024+512}")
    extra(0)
    for i in range(2, pq): e(i)
    if t in late: a("s_waitcnt lgkmcnt(1)")
    if t < 63: a(f"v_mfma_f32_32x32x16_bf16 {vr(nxt,16)}, {vr(vK,4)}, {vr(vQ,4)}, {vr(vC,16)}")
    if t < 62 and t + 1 not in late: a(f"ds_read_b128 {vr(vK,4)}, v{vKA} offset:{(t+2)*1024}")
    extra(1)
    for i in range(pq, p0): e(i)
    a(f"v_smfmac_f32_32x32x32_bf16 {vr(vO,16)}, {vr(vV0,4)}, {vr(cur,8)}, v{vIDX}")
    if t < 63: a(f"ds_read_b128 {vr(vV0,4)}, v{vVA} offset:{(tt+1)*1024}")
    extra(2)
    for i in range(p0, 16): e(i)
    if tt == 7 and t < 63: a(f"v_add_u32 v{vVA}, v{vVST}, v{vVA}")

def kv_dma(c):
    ld = lambda o: f"buffer_load_dwordx4 v{vOFF}, s[{sWS}:{sWS+3}], s67 offen offset:{o} sc1 lds"
    k = [f"s_add_u32 m0, s{sM0}, {LDS_K + c*8192}", f"s_add_u32 s67, s{sKVO}, {WS_KF + c*0x40000}", ld(0)]
    v = [f"s_add_u32 m0, s{sM0}, {LDS_V + c*8192}", f"s_add_u32 s67, s{sKVO}, {WS_VF + c*0x40000}", ld(0)]
    return k, [ld(1024)], v, [ld(1024)]

vGE, vGB, vGO, vFA, vFD, vFG = 184, 185, 186, 187, 188, 190
def late_stores(a, P, cls):
    a(f"s_cmp_lg_u32 s{sCLS}, {cls}\ns_cbranch_scc1 {P}_nost{cls}")
    for n in range(8): a(p1store(n))
    a(f"{P}_nost{cls}:")
def wave_flag(a):
    a(f"""
    s_mov_b64 exec, {0xffff if OPT['wide'] else 1}
    s_waitcnt vmcnt(0)
    buffer_store_dwordx2 {vr(vFD,2)}, v{vFG}, s[{sWS}:{sWS+3}], s{sFL} offen {OPT['sfl']}
    s_mov_b64 exec, -1
    """)

def attn_role(a, P, role):
    BX = OPT['bx']
    B1, TS, TA, (TP, TC) = OPT['b1'], OPT['ts'], OPT['ta'], OPT['tc']
    DM = {2: (TC, TC), 3: (TC+1, TC+1), 4: (18, 19), 5: (20, 21), 6: (22, 23), 7: (24, 25)}
    fl = lambda va: f"buffer_load_dwordx2 {vr(vFD,2)}, v{va}, s[{sWS}:{sWS+3}], 0 offen {OPT['pfl']}"
    def check(tag, va, mask=None):
        a(f"s_waitcnt vmcnt(0)\nv_cmp_ne_u64 vcc, s[{sN}:{sN+1}], {vr(vFD,2)}\ns_nop 0")
        if mask: a(f"s_and_b64 vcc, vcc, {mask}")
        a(f"s_cbranch_vccz {P}_{tag}_ok")
        poll(a, P, tag, va, vFD, "0", mask)
    for t in range(64):
        ins = {}
        add = lambda k, l: ins.setdefault(k, []).extend(l)
        if role == 'B':
            if t == TP or t == BX: add(0, [fl(vFG)])
            if t == TC:
                check("c2", vFG, 0xff << 16)
                stamp(a, 1)
            if t == 18: check("c4", vFG)
            for c, (tk, tv) in DM.items():
                d = kv_dma(c)
                if t == tk and t == tv: add(0, d[0] + d[1]); add(2, d[2] + d[3])
                elif t == tk: add(0, d[0]); add(2, d[1])
                elif t == tv: add(0, d[2]); add(2, d[3])
            if t == 26: add(0, [fl(vFA)])
            if t == 30: check("all", vFA)
            if t == B1: a("s_waitcnt vmcnt(0)")
        else:
            for cls in (2, 3):
                if t == TS[cls-2]: late_stores(a, P, cls)
            for cls in (1, 2):
                if t == TA[cls-1]:
                    a(f"s_cmp_lg_u32 s{sCLS}, {cls}\ns_cbranch_scc1 {P}_nofl{cls}")
                    wave_flag(a)
                    stamp(a, 6)
                    a(f"{P}_nofl{cls}:")
        if t == BX: a("s_waitcnt vmcnt(0)")
        if t in (B1, BX, 30): a("s_barrier")
        if t == BX: stamp(a, 2 if role == 'B' else 13)
        if t == 30: stamp(a, 3 if role == 'B' else 14)
        if role == 'A' and t == BX:
            add(0, [f"s_mov_b64 exec, s[70:71]",
                    f"buffer_store_dwordx2 {vr(vFD,2)}, v{vFA}, s[{sWS}:{sWS+3}], 0 offen sc1",
                    "s_mov_b64 exec, -1"])
        if role == 'A' and 30 <= t < 58:
            for k, i in ((0, t - 30),) + (((2, t - 2),) if t < 34 else ()):
                add(k, [f"s_add_u32 s58, s64, {i * 0x400}",
                        f"s_and_b32 s58, s58, 0x7fff",
                        f"s_add_u32 s58, s58, s63",
                        f"buffer_load_dwordx4 {vr(vWO+4*i,4)}, v{vOFF}, s[{sWS}:{sWS+3}], s58 offen sc1"])
        if role == 'A' and t == OPT['pft']:
            add(0, [f"s_lshl_b32 s58, s{sQB}, 3", f"s_lshr_b32 s59, s{sHEAD}, 2", "s_add_u32 s58, s58, s59", "s_lshl_b32 s58, s58, 2",
                    f"s_add_u32 s58, s58, s{sWAVE}", "s_lshl_b32 s58, s58, 10", f"s_add_u32 s58, s58, {WS_F2}",
                    f"buffer_load_dword v{vT0}, v{vOFF}, s[{sWS}:{sWS+3}], s58 offen {OPT['pfl']}"])
        if role == 'B' and 32 <= t < 48:
            i = t - 32
            kq, ty, par = i >> 2, (i >> 1) & 1, i & 1
            va = vGO if par else (vGB if ty else vGE)
            add(0, [f"s_add_u32 s58, s63, {ty*G_TS + 2*kq*G_CS}",
                    f"buffer_load_dwordx4 {vr(vG+4*i,4)}, v{va}, s[{sWS}:{sWS+3}], s58 offen sc1"])
        if OPT['prio']:
            pr = {0: 3, 3: 2, 5: 1, 6: 3, 10: 2, 12: 1} if B1 == 6 else {0: 3, BX-6: 2, BX-2: 1}
            pr.update({BX: 3, 23: 2, 27: 1, 30: 3, 48: 2, 56: 1, 61: 0})
            if t in pr: add(1, [f"s_setprio {pr[t]}"])
        utile(a, t, ins, (15,) if BX == 15 else ())
    a(f"s_branch {P}_attn_done")

def gen_kernel(name):
    a = Asm(); P = "F"
    a(f"s_cmp_ge_u32 s2, 256\ns_cbranch_scc1 {P}_end")
    stamp_init(a)
    vWG = 32
    def gather(sLW):
        a.c("gather one Wo fragment (loader waves 0,1)")
        a(f"""
        s_cmp_ge_u32 s{sLW}, 2
        s_cbranch_scc1 {P}_nowo
        s_load_dwordx2 s[64:65], s[0:1], {KA_WO}
        s_mov_b32 s66, 0x80000
        s_mov_b32 s67, 0x20000
        s_lshl_b32 s63, s2, 1
        s_add_u32 s63, s63, s{sLW}
        s_and_b32 s58, s63, 31
        s_lshl_b32 s58, s58, 14
        s_lshr_b32 s59, s63, 5
        s_lshl_b32 s59, s59, 6
        s_add_u32 s58, s58, s59
        v_and_b32 v12, 3, v2
        v_lshrrev_b32 v13, 3, v2
        v_lshl_add_u32 v12, v13, 2, v12
        v_bfe_u32 v13, v2, 2, 1
        v_lshl_add_u32 v12, v13, 4, v12
        v_lshlrev_b32 v12, 1, v12
        v_lshl_add_u32 v12, v3, 12, v12
        s_add_u32 s59, s58, 0x2000
        s_waitcnt lgkmcnt(0)
        """)
        for s in range(8):
            a(f"buffer_load_ushort v{vWG + s}, v12, s[64:67], s{58 + s//4} offen offset:{(s&3)*1024}")
        a(f"{P}_nowo:")
    def loader_mid(sLW):
        wg_roles(a)
        a.c("ones region (rows 16 and 20 of the V operand)")
        a(f"""
        v_and_b32 v12, 11, v1
        v_cmp_eq_u32 vcc, 0, v12
        v_mov_b32 v13, 0x{ONES:04x}{ONES:04x}
        v_subrev_u32 v12, 0x100, v0
        v_cndmask_b32 v20, 0, v13, vcc
        v_lshlrev_b32 v12, 4, v12
        v_mov_b32 v21, v20
        v_mov_b32 v22, v20
        v_mov_b32 v23, v20
        v_add_u32 v12, {LDS_ONES}, v12
        ds_write_b128 v12, v[20:23]
        ds_write_b128 v12, v[20:23] offset:4096
        ds_write_b128 v12, v[20:23] offset:6144
        """)
        a.c("sequence-DFT twiddles of this wave's FNet job, kept in registers")
        a(f"""
        s_and_b32 s58, s{sLW}, 1                ; mt
        s_lshr_b32 s59, s{sLW}, 1               ; kh
        s_lshl_b32 s60, s59, 4
        v_xor_b32 v12, s60, v2
        s_lshl_b32 s60, s58, 10
        s_add_u32 s60, s60, s{sR}
        v_lshl_add_u32 v12, v12, 5, s60         ; t
        s_lshl_b32 s60, s59, 5
        v_lshl_add_u32 v13, v3, 2, s60          ; first s2
        v_mul_u32_u24 v13, v12, v13
        v_lshlrev_b32 v14, 2, v12               ; 4t
        s_mov_b32 s40, 1.0                      ; p
        s_mov_b32 s41, 0                        ; q
        s_mov_b32 s42, -1.0                     ; -sigma
        s_cmp_gt_u32 s{sR}, 16
        s_cselect_b32 s42, 1.0, s42
        s_cmp_eq_u32 s{sSLOT}, 0
        s_cselect_b32 s42, 0, s42
        s_cmp_eq_u32 s{sR}, 16
        s_cselect_b32 s40, 0, s40
        s_cselect_b32 s41, 1.0, s41
        s_cmp_ge_u32 s{sJJ}, 4
        s_cselect_b32 s46, 0x80000000, 0
        s_xor_b32 s43, s40, s46                 ; mu*p
        s_xor_b32 s44, s41, s46                 ; mu*q
        s_xor_b32 s45, s42, s46
        s_xor_b32 s45, s45, 0x80000000          ; mu*sigma
        """)
        for kq in range(4):
            for T in range(4):
                a(f"""
                v_and_b32 v24, 0x7ff, v13
                v_cvt_f32_u32 v24, v24
                v_mul_f32 v24, {hex(f32bits(1/2048))}, v24
                v_cos_f32 v25, v24
                v_sin_f32 v26, v24
                v_add_u32 v13, v13, v12
                v_mul_f32 v27, s40, v25
                v_mul_f32 v28, s42, v26
                v_fmac_f32 v28, s41, v25
                v_cvt_pk_bf16_f32 v{vTW + 8*kq + T}, v27, v28
                v_mul_f32 v27, s43, v26
                v_mul_f32 v28, s45, v25
                v_fmac_f32 v28, s44, v26
                v_cvt_pk_bf16_f32 v{vTW + 8*kq + 4 + T}, v27, v28
                """)
            if kq < 3: a("v_add_u32 v13, v13, v14")
    def loader_post(sLW):
        tag_use(a, f"{P}_tagL")
        a(f"""
        s_cmp_ge_u32 s{sLW}, 2
        s_cbranch_scc1 {P}_nowo2
        s_lshl_b32 s63, s63, 10
        s_add_u32 s63, s63, {WS_WOF}
        v_lshlrev_b32 v12, 4, v1
        v_lshl_or_b32 v{vWG}, v{vWG+1}, 16, v{vWG}
        v_lshl_or_b32 v{vWG+1}, v{vWG+3}, 16, v{vWG+2}
        v_lshl_or_b32 v{vWG+2}, v{vWG+5}, 16, v{vWG+4}
        v_lshl_or_b32 v{vWG+3}, v{vWG+7}, 16, v{vWG+6}
        buffer_store_dwordx4 {vr(vWG,4)}, v12, s[{sWS}:{sWS+3}], s63 offen sc1
        {P}_nowo2:
        """)
        a.c("role B set-up")
        a(f"""
        s_lshl_b32 s58, s{sJJ}, 5
        v_add_u32 v24, s58, v2                  ; 32J+n
        v_sub_u32 v26, 0x100, v24
        v_sub_u32 v27, 0xff, v24
        s_cmp_ge_u32 s{sJJ}, 4
        s_cselect_b64 vcc, -1, 0
        v_cndmask_b32 v26, v24, v26, vcc
        v_cndmask_b32 v27, v24, v27, vcc
        v_and_b32 v28, 0x7f, v26
        v_cmp_eq_u32 vcc, 0, v28
        v_mul_u32_u24 v25, {G_CS}, v3
        v_lshl_add_u32 v{vGE}, v26, 4, v25
        v_lshl_add_u32 v{vGO}, v27, 4, v25
        v_add_u32 v{vGO}, {G_PS}, v{vGO}
        v_mov_b32 v28, 0x40000000
        v_cndmask_b32 v{vGB}, v{vGE}, v28, vcc
        v_subrev_u32 v{vFA}, 0x100, v0
        v_lshlrev_b32 v{vFA}, 7, v{vFA}
        v_add_u32 v{vFA}, {WS_F1}, v{vFA}
        s_mul_i32 s63, s{sSLOT}, {G_SS}
        s_lshr_b32 s58, s{sLW}, 1               ; kh
        s_mul_i32 s58, s58, {8*G_CS}
        s_add_u32 s63, s63, s58
        s_add_u32 s63, s63, {WS_G}
        """)
        flag_addr(sLW)
        a(f"""
        s_lshl_b32 s{sM0}, s{sLW}, 11
        s_and_b32 s58, s{sHEAD}, 2
        s_xor_b32 s58, s58, s{sLW}
        s_lshl_b32 s58, s58, 11
        s_lshl_b32 s{sKVO}, s{sHEAD}, 13
        s_add_u32 s{sKVO}, s{sKVO}, s58
        s_lshl_b32 s61, s{sQB}, 18
        s_add_u32 s61, s61, s{sKVO}             ; Q fragments
        v_mov_b32 v{k1.vSA}, 0
        """)
        common_setup()
        a("s_barrier")
        if OPT['xp']:
            a("s_mov_b64 exec, 0xf8000")
            poll(a, P, "h1", vFG, vFD, "0")
            a("s_mov_b64 exec, -1")
        else: poll(a, P, "h1", vFG, vFD, "0", 0xfffff)
        stamp(a, 6)
        d0, d1 = kv_dma(0), kv_dma(1)
        for x in d0[0] + d0[1]: a(x)
        a(f"s_add_u32 m0, s{sM0}, {LDS_XB}\ns_nop 0")
        for o in (0, 1024): a(f"buffer_load_dwordx4 v{vOFF}, s[{sWS}:{sWS+3}], s61 offen offset:{o} sc1 lds")
        for x in d0[2] + d0[3] + sum(d1, []): a(x)
        if OPT['early']: a("s_barrier")
        a(f"s_mov_b32 s{sCLS}, 0\ns_waitcnt vmcnt({4 if OPT['b1'] == 6 else 0})\ns_branch {P}_b2")
    def flag_addr(sLW):
        a(f"""
        v_bfe_u32 v24, v1, 1, 2
        v_bfe_u32 v25, v1, 3, 1
        v_lshl_add_u32 v24, v24, 1, v25
        v_and_b32 v25, 1, v1
        v_lshl_add_u32 v24, v25, 5, v24
        s_lshl_b32 s58, s{sLW}, 3
        s_add_u32 s58, s58, 32
        v_add_u32 v24, s58, v24
        s_lshl_b32 s58, s{sQB}, 2
        s_add_u32 s58, s58, s{sLW}
        v_mov_b32 v25, s58
        s_mov_b32 vcc_lo, 0xffff0000
        s_mov_b32 vcc_hi, 0
        v_cndmask_b32 v24, v25, v24, vcc
        s_lshr_b32 s58, s{sHEAD}, 2
        s_lshl_b32 s58, s58, 7
        s_add_u32 s58, s58, {WS_FL}
        v_lshl_add_u32 v{vFG}, v24, 10, s58
        """)
    def common_setup():
        a(f"""
        s_load_dwordx2 s[{sOUT}:{sOUT+1}], s[0:1], {KA_OUT}
        s_mov_b32 s{sOUT+2}, 0x400000
        s_mov_b32 s{sOUT+3}, 0x20000
        v_lshlrev_b32 v{vOFF}, 4, v1
        v_lshlrev_b32 v28, 4, v0
        v_add_u32 v28, {LDS_XB}, v28
        v_mov_b32 v{vIDX}, 0xdddd
        """)
        attn.addr_setup(a)
        for i in range(16): a(f"v_mov_b32 v{vO+i}, 0")
    def flag_regs():
        a(f"v_mov_b32 v{vFD}, s{sN}\nv_mov_b32 v{vFD+1}, s{sN+1}\nv_lshlrev_b32 v{vFG}, 3, v1")
    def qkv_post():
        stamp(a, 4)
        wave_flag(a)
        stamp(a, 5)
        a(f"s_barrier\ns_branch {P}_p1done")
    def comp_pre():
        wg_roles(a)
        if OPT['warm']: flag_addr(sWAVE)
        a("s_waitcnt lgkmcnt(0)")
        if OPT['warm']:
            a.c("first touch of the flag lines that the loader waves poll later")
            a(f"buffer_load_dwordx2 {vr(vFD,2)}, v{vFG}, s[{sWS}:{sWS+3}], 0 offen {OPT['pfl']}")
        a(f"""
        s_cmp_lg_u32 s{sWAVE}, 0
        s_cbranch_scc1 {P}_cp1
        """)
        if OPT['codepf']:
            a.c("pull this kernel's code into L2 (each workgroup a slice)")
            a(f"""
            s_getpc_b64 s[58:59]
            {P}_pc:
            s_lshr_b32 s60, s2, 3
            s_lshl_b32 s60, s60, 4
            v_and_b32 v12, 15, v1
            v_add_u32 v12, s60, v12
            v_lshlrev_b32 v12, 7, v12
            v_min_u32 v12, {P}_end-{P}_pc, v12
            v_mov_b32 v13, s59
            v_add_co_u32 v12, vcc, s58, v12
            s_nop 1
            v_addc_co_u32 v13, vcc, 0, v13, vcc
            global_load_dword v200, v[12:13], off
            """)
        a(f"""
        s_cmp_lg_u32 s2, 0
        s_cbranch_scc1 {P}_cp1
        """)
        a.c("launch tag for the hand-off flags: never equal to a tag of an earlier launch")
        a(f"""
        s_memrealtime s[58:59]
        s_waitcnt lgkmcnt(0)
        s_or_b32 s58, s58, 1
        v_mov_b32 v12, 0
        v_mov_b32 v16, s58
        v_mov_b32 v17, s59
        s_mov_b64 exec, 1
        global_store_dwordx2 v12, v[16:17], s[68:69] sc1
        s_mov_b64 exec, -1
        {P}_cp1:
        """)
    k1.VSCALE = 2.0 ** VS_LOG2
    k1.MIDPOS = OPT["midpos"]; k1.RC = OPT["rc"]
    h = OPT['h']
    hooks = {h[0]: lambda m: tag_load(a), h[1]: lambda m: (tag_use(a, f"{P}_tag{m}"), flag_regs())}
    k1.phase1(a, P, "sc1", gather, loader_mid, loader_post, comp_pre, hooks, lambda: (a('s_waitcnt lgkmcnt(0)'), tag_load(a)), qkv_post)
    a.c("role A set-up")
    a(f"""
    s_lshl_b32 s58, s2, 7
    s_add_u32 s58, s58, {WS_F1}
    v_add_u32 v{vFA}, s58, v{vFG}
    v_mov_b32 v{vGE}, 0
    v_mov_b32 v{vGB}, 0
    v_mov_b32 v{vGO}, 0
    s_cmp_eq_u32 s{sWAVE}, 0
    s_cselect_b32 s70, 0xffff, 0
    s_mov_b32 s71, 0
    s_and_b32 s63, s{sHEAD}, 3
    s_lshl_b32 s63, s63, 2
    s_add_u32 s63, s63, s{sWAVE}            ; n tile
    s_lshl_b32 s63, s63, 15
    s_add_u32 s63, s63, {WS_WOF}
    s_lshl_b32 s64, s{sWAVE}, 13
    """)
    common_setup()
    if OPT['early']:
        a("s_barrier")
        late_stores(a, P, 1)
    a(f"""
    {P}_b2:
    s_waitcnt lgkmcnt(0)
    s_barrier
    """)
    stamp(a, 7)
    a(f"ds_read_b128 {vr(vQ,4)}, v28")
    a(f"""
    ds_read_b128 {vr(vK,4)}, v{vKA}
    ds_read_b128 {vr(vV1,4)}, v{vKA} offset:1024
    ds_read_b128 {vr(vV0,4)}, v{vVA}
    """)
    if not OPT['early']: late_stores(a, P, 1)
    a(f"""
    s_waitcnt lgkmcnt(2)
    v_mfma_f32_32x32x16_bf16 {vr(vS[0],16)}, {vr(vK,4)}, {vr(vQ,4)}, 0
    s_waitcnt lgkmcnt(1)
    v_mfma_f32_32x32x16_bf16 {vr(vS[1],16)}, {vr(vV1,4)}, {vr(vQ,4)}, 0
    s_nop 10
    """)
    attn.max16(a, vT0, vS[0], True)
    attn.max16(a, vT0, vS[1], False)
    attn.set_c(a, SHIFT)
    a(f"""
    s_nop 1
    v_mfma_f32_32x32x16_bf16 {vr(vS[0],16)}, {vr(vK,4)}, {vr(vQ,4)}, {vr(vC,16)}
    ds_read_b128 {vr(vK,4)}, v{vKA} offset:1024
    s_mov_b32 s65, 0
    s_lshl_b32 s58, s{sQB}, 3
    s_add_u32 s58, s58, s{sWAVE}
    s_lshl_b32 s58, s58, 5
    s_add_u32 s58, s58, s{sHEAD}
    s_lshl_b32 s73, s58, 7
    s_add_u32 s73, s73, {WS_F2}
    s_lshl_b32 s72, s58, 10
    s_add_u32 s72, s72, {WS_OF}
    s_cmp_lt_u32 s{sWAVE}, 4
    s_cbranch_scc0 {P}_roleB
    """)
    attn_role(a, P, 'A')
    a(f".p2align 6\n{P}_roleB:")
    attn_role(a, P, 'B')
    a.c("fallback pass (true row max)")
    a(f".p2align 6\n{P}_loop:")
    attn.iteration(a, 6)
    a(f"""
    s_sub_u32 s66, s66, 1
    s_cmp_lg_u32 s66, 0
    s_cbranch_scc1 {P}_loop
    {P}_attn_done:
    s_waitcnt lgkmcnt(0)
    v_smfmac_f32_32x32x32_bf16 {vr(vO,16)}, {vr(vV1,4)}, {vr(vS[1]+8,8)}, v{vIDX}
    s_mov_b32 s58, s72
    s_mov_b32 s59, s73
    s_cmp_lg_u32 s65, 0
    s_waitcnt vmcnt(0)
    s_nop 7
    s_cbranch_scc1 {P}_fin
    """)
    a.c("run-time check of the max stand-in: row sum below 2^120 and all accumulators finite")
    a(f"v_add_f32 v{vT0}, abs(v{vO}), abs(v{vO+1})")
    for i in range(2, 8): a(f"v_add_f32 v{vT0}, v{vT0}, abs(v{vO+i})")
    a(f"""
    v_mov_b32 v{vT1}, 0x7b800000
    v_cmp_nlt_f32 vcc, v{vO+8}, v{vT1}
    v_mov_b32 v{vT1}, 0x7f000000
    v_cmp_nlt_f32 s[60:61], v{vT0}, v{vT1}
    s_nop 1
    s_or_b64 vcc, vcc, s[60:61]
    s_cbranch_scc0 {P}_fin
    """)
    attn.addr_setup(a)
    a(f"""
    v_mov_b32 v{vT0}, 0xff800000
    s_movk_i32 s66, 64
    {P}_maxloop:
    ds_read_b128 {vr(vK,4)}, v{vKA}
    v_add_u32 v{vKA}, 0x400, v{vKA}
    s_waitcnt lgkmcnt(0)
    v_mfma_f32_32x32x16_bf16 {vr(vS[0],16)}, {vr(vK,4)}, {vr(vQ,4)}, 0
    s_nop 12
    """)
    attn.max16(a, vT0, vS[0], False)
    a(f"""
    s_sub_u32 s66, s66, 1
    s_cmp_lg_u32 s66, 0
    s_cbranch_scc1 {P}_maxloop
    """)
    attn.set_c(a, 0.0)
    a(f"v_mov_b32 v{vKA}, v{vOFF}")
    attn.prime(a)
    a(f"""
    s_mov_b32 s65, 1
    s_movk_i32 s66, 8
    s_branch {P}_loop
    {P}_fin:
    v_rcp_f32 v{vT0}, v{vO+8}
    s_nop 0
    """)
    for i in range(8): a(f"v_mul_f32 v{vO+i}, v{vO+i}, v{vT0}")
    for i in range(4): a(f"v_cvt_pk_bf16_f32 v{vO+i}, v{vO+2*i}, v{vO+2*i+1}")
    a(f"buffer_store_dwordx4 {vr(vO,4)}, v{vOFF}, s[{sWS}:{sWS+3}], s58 offen sc1")
    stamp(a, 8)
    a(f"""
    v_mov_b32 v8, s{sN}
    v_mov_b32 v9, s{sN+1}
    v_lshrrev_b32 v10, 1, v{vOFF}
    v_and_b32 v2, 31, v0
    v_bfe_u32 v3, v0, 5, 1
    s_cmp_lt_u32 s{sWAVE}, 4
    s_cbranch_scc1 {P}_tailA
    """)
    ACC = 24
    a("s_waitcnt vmcnt(1)")
    for kq in range(4):
        for ty in range(2):
            for par in range(2):
                i = 4*kq + 2*ty + par
                c = "0" if kq == 0 and ty == 0 else vr(ACC+16*par,16)
                a(f"v_mfma_f32_32x32x16_bf16 {vr(ACC+16*par,16)}, {vr(vTW+8*kq+4*ty,4)}, {vr(vG+4*i,4)}, {c}")
    a(f"""
    s_sub_u32 s60, s{sWAVE}, 4
    s_lshl_b32 s61, s60, 12
    s_add_u32 s61, s61, {LDS_XB}
    v_add_u32 v11, s61, v{vOFF}
    s_xor_b32 s61, s60, 2
    s_lshl_b32 s61, s61, 12
    s_add_u32 s61, s61, {LDS_XB}
    v_add_u32 v12, s61, v{vOFF}
    v_lshlrev_b32 v4, 2, v2
    v_lshl_add_u32 v4, v3, 18, v4
    s_and_b32 s61, s60, 1
    s_lshl_b32 s61, s61, 1
    s_lshr_b32 s60, s60, 1
    s_add_u32 s61, s61, s60
    s_lshl_b32 s61, s61, 9
    s_add_u32 s61, s61, s{sR}
    s_lshl_b32 s61, s61, 11
    s_lshl_b32 s60, s{sJJ}, 7
    s_add_u32 s61, s61, s60
    """)
    for q in range(4):
        a(f"ds_write_b128 v11, {vr(ACC + 16*(q>>1) + 8 + 4*(q&1), 4)} offset:{q*1024}")
    a(f"""
    s_waitcnt vmcnt(0)
    s_mov_b64 exec, {0xffff if OPT['wide'] else 1}
    """)
    a(f"buffer_store_dwordx2 v[8:9], v10, s[{sWS}:{sWS+3}], s59 offen {OPT['sfl']}")
    a(f"""
    s_mov_b64 exec,  -1
    s_waitcnt lgkmcnt(0)
    s_barrier
    """)
    for q in range(4): a(f"ds_read_b128 {vr(56 + 4*q, 4)}, v12 offset:{q*1024}")
    a("s_waitcnt lgkmcnt(0)")
    for r in range(8):
        a(f"v_add_f32 v{ACC+r}, v{ACC+r}, v{56+r}")
        a(f"v_add_f32 v{ACC+16+r}, v{ACC+16+r}, v{64+r}")
        a(f"v_cvt_pk_bf16_f32 v{72+r}, v{ACC+r}, v{ACC+16+r}")
        a(f"s_add_u32 s60, s61, {(8*(r//4) + r%4) * 32 * 2048}")
        a(f"buffer_store_dword v{72+r}, v4, s[{sOUT}:{sOUT+3}], s60 offen {OPT['oa']}")
    a(f"s_branch {P}_done")
    a(f"""
    {P}_tailA:
    s_lshl_b32 s60, s{sQB}, 3
    s_lshr_b32 s61, s{sHEAD}, 2
    s_add_u32 s60, s60, s61
    s_lshl_b32 s61, s60, 5
    s_lshl_b32 s63, s{sWAVE}, 3
    s_add_u32 s61, s61, s63
    s_lshl_b32 s63, s61, 10
    s_add_u32 s63, s63, {WS_OF}
    s_lshl_b32 s61, s61, 7
    s_add_u32 s61, s61, {WS_F2}
    v_and_b32 v11, 7, v0
    v_lshlrev_b32 v11, 7, v11
    s_lshl_b32 s64, s{sWAVE}, 13
    v_add_u32 v12, s64, v{vOFF}
    """)
    for g in range(1, 4): a(f"v_add_u32 v{12+g}, 0x2000, v{11+g}\nv_and_b32 v{12+g}, 0x7fff, v{12+g}")
    a(f"""
    s_waitcnt vmcnt(0)
    s_mov_b64 exec, {0xffff if OPT['wide'] else 1}
    """)
    a(f"buffer_store_dwordx2 v[8:9], v10, s[{sWS}:{sWS+3}], s59 offen {OPT['sfl']}")
    a(f"""
    s_mov_b64 exec,  -1
    s_barrier
    """)
    stamp(a, 9)
    poll(a, P, "h2", 11, 16, "s61")
    stamp(a, 10)
    a(f"s_mov_b32 m0, s64\ns_nop 0")
    for i in range(4): a(f"buffer_load_dwordx4 v{vOFF}, s[{sWS}:{sWS+3}], s63 offen offset:{i*1024} sc1 lds")
    a(f"s_add_u32 m0, s64, 4096\ns_add_u32 s63, s63, 4096")
    for i in range(4): a(f"buffer_load_dwordx4 v{vOFF}, s[{sWS}:{sWS+3}], s63 offen offset:{i*1024} sc1 lds")
    a(f"""
    v_lshlrev_b32 v4, 11, v2
    v_lshl_add_u32 v4, v3, 5, v4
    s_lshl_b32 s60, s60, 16
    s_and_b32 s61, s{sHEAD}, 3
    s_lshl_b32 s61, s61, 2
    s_add_u32 s61, s61, s{sWAVE}
    s_lshl_b32 s61, s61, 6
    s_add_u32 s60, s60, s61
    s_add_u32 s60, s60, 1024
    s_waitcnt vmcnt(0)
    s_barrier
    """)
    stamp(a, 11)
    F0, ACC = 40, 24
    NB = 8
    rd = lambda i: a(f"ds_read_b128 {vr(F0+4*(i%NB),4)}, v{12+i//8} offset:{(i%8)*1024}")
    for i in range(NB): rd(i)
    for i in range(32):
        a(f"s_waitcnt lgkmcnt({min(NB-1, 31-i)})")
        a(f"v_mfma_f32_32x32x16_bf16 {vr(ACC,16)}, {vr(vWO+4*i,4)}, {vr(F0+4*(i%NB),4)}, {'0' if i == 0 else vr(ACC,16)}")
        if i + NB < 32: rd(i + NB)
    a("s_nop 11")
    for i in range(8): a(f"v_cvt_pk_bf16_f32 v{F0+i}, v{ACC+2*i}, v{ACC+2*i+1}")
    a(f"buffer_store_dwordx4 {vr(F0,4)}, v4, s[{sOUT}:{sOUT+3}], s60 offen {OPT['ob']}")
    a(f"buffer_store_dwordx4 {vr(F0+4,4)}, v4, s[{sOUT}:{sOUT+3}], s60 offen offset:16 {OPT['ob']}")
    stamp(a, 12)
    a(f"{P}_done:")
    stamp_flush(a, 0)
    a(f"{P}_end:\ns_endpgm")
    return kernel_header(name) + a.text() + kernel_desc(name, VGPRS)

def header():
    ref = open(f"cdna_kernels/{NAME}.s.ref").read().split("\n")
    return "\n".join(l for l in ref if l.startswith(";") and "@launch" not in l and "Override" not in l and "grid=ceil" not in l) + "\n"
def gen(aslist=True):
    s = header()
    if aslist: s += f"; @launch kernel={NAME}_kernel grid=(256,1,1) block=(512,1,1) lds={LDS_BYTES}\n"
    else: s += f"; @launch grid=(256,1,1) block=(512,1,1) lds={LDS_BYTES}\n"
    s += '.amdgcn_target "amdgcn-amd-amdhsa--gfx950"\n'
    return s + gen_kernel(NAME + "_kernel")
if __name__ == "__main__":
    open(f"fused.s", "w").write(gen(False))
    open(f"fused_list.s", "w").write(gen(True))
```

```python
class Asm:
    def __init__(self):
        self.lines = []
    def __call__(self, s=""):
        for l in s.split("\n"):
            l = l.strip()
            if not l: continue
            if l.endswith(":") or l.startswith("."):
                self.lines.append(l)
            else:
                self.lines.append("    " + l)
    def c(self, s):
        self.lines.append("    ; " + s)
    def text(self):
        return "\n".join(self.lines) + "\n"

def vr(a, n):
    return f"v[{a}:{a+n-1}]" if n > 1 else f"v{a}"
def sr(a, n):
    return f"s[{a}:{a+n-1}]" if n > 1 else f"s{a}"

def kernel_header(name):
    return f""".text
.globl {name}
.p2align 8
.type {name},@function
{name}:
"""
def kernel_desc(name, vgpr, sgpr=96, accum=None):
    if accum is None: accum = (vgpr + 3) // 4 * 4
    return f""".section .rodata,"a"
.p2align 6
.amdhsa_kernel {name}
  .amdhsa_next_free_vgpr {vgpr}
  .amdhsa_next_free_sgpr {sgpr}
  .amdhsa_accum_offset {accum}
  .amdhsa_group_segment_fixed_size 0
  .amdhsa_kernarg_size 88
  .amdhsa_user_sgpr_count 2
  .amdhsa_user_sgpr_kernarg_segment_ptr 1
  .amdhsa_system_sgpr_workgroup_id_x 1
  .amdhsa_float_denorm_mode_32 3
.end_amdhsa_kernel
"""
KA_AX, KA_SRE, KA_SIM, KA_HRE, KA_HIM, KA_BX, KA_WQKV, KA_WO, KA_OUT, KA_DBG, KA_WS = [8*i for i in range(11)]
WS_QF = 0x000000
WS_KF = 0x200000
WS_VF = 0x400000
WS_OF = 0x600000
WS_G  = 0x800000
WS_TW = 0xC00000
WS_WOF = 0xC00000
WS_F1 = 0xD00000
WS_F2 = 0xD40000
WS_FL = 0xD80000
WS_FG = 0xDA0000
WS_CEN = 0xDC0000
WS_FAR = 0x1000000
WS_STAMP = 0xE00000
WS_BYTES = 0x1600000

STAMPS = False
STAMP_INS = 's_memrealtime'
NST = 16
import os
ONLY = eval(os.environ.get('ONLY', 'None'))
def stamp(a, i):
    if STAMPS and (ONLY is None or i in ONLY): a(f"{STAMP_INS} s[74:75]\ns_waitcnt lgkmcnt(0)\ns_mov_b32 s{76+(i&15)}, s74")
_st0 = stamp
CYC = eval(os.environ.get('CYC', '{}'))
def stamp(a, i):
    _st0(a, i)
    if STAMPS and i in CYC: a(f"s_memtime s[74:75]\ns_waitcnt lgkmcnt(0)\ns_mov_b32 s{76+CYC[i]}, s74")
def stamp_init(a):
    if STAMPS:
        stamp(a, 0)
        for i in range(1, NST): a(f"s_mov_b32 s{76+i}, 0")
def stamp_flush(a, kid):
    if not STAMPS: return
    a("s_waitcnt vmcnt(0)")
    stamp(a, NST - 1)
    a(f"""
    s_load_dwordx2 s[92:93], s[0:1], {KA_WS}
    v_lshrrev_b32 v1, 6, v0
    s_mov_b32 s94, {WS_BYTES}
    s_mov_b32 s95, 0x20000
    v_readfirstlane_b32 s3, v1
    s_lshl_b32 s4, s2, 3
    s_add_u32 s4, s4, s3
    s_lshl_b32 s4, s4, 6
    s_add_u32 s4, s4, {WS_STAMP + kid * 0x20000}
    s_waitcnt lgkmcnt(0)
    """)
    for i in range(NST): a(f"v_mov_b32 v{8+i}, s{76+i}")
    a("v_mov_b32 v1, 0")
    for i in range(4): a(f"buffer_store_dwordx4 v[{8+4*i}:{11+4*i}], v1, s[92:95], s4 offen offset:{16*i}")
```

```python
from asmlib import *
import struct, math
def f32bits(x): return struct.unpack("<I", struct.pack("<f", x))[0]

G_PS = 136 * 16
G_CS = 2 * G_PS
G_SS = 16 * G_CS
G_TS = 16 * G_SS
K1_LDS = 131072
LX, LW = 0, 65536
QSCALE = 0.25 * math.log2(math.e)
VSCALE = 1.0

sWAVE, sXCD, sI, sJ, sROT = 8, 9, 10, 11, 12
sFL, sCLS = 14, 15
sST, vST, vSA = 36, 144, 176
sX, sW, sWS = 16, 20, 24
K1_VGPR = 144
MIDPOS = 0
ROT = 8
RMASK = 3
FLATE = 1
NTF = ''
FINIT = 4
FDEL = 1
SEQF = '02461357'
AMAJ = 1
MIX = 1
M16X = 0
NTX = ''
NTW = ''
CHST = 0
SEQ = '01234567'
CF = 256
ORDER = 'gmi'
DEPTH = 2
NST = ''
RC = (1, 1, 0, 7)

def gemm_loop(a, P, mode, hooks={}):
    vXA, vWA, F0, ACC = 4, 8, 16, 64
    if mode == 'f':
        nx, setsz = 4, 20
    else:
        nx, setsz = 2, 16
    def reads(slot, ks, st):
        base = F0 + st * setsz
        r = []
        if mode == 'f':
            r.append(f"ds_read_b128 {vr(base+16,4)}, v{vWA+ks} offset:{slot*16384}")
            for t in range(4): r.append(f"ds_read_b128 {vr(base+4*t,4)}, v{vXA+ks} offset:{slot*16384+t*4096}")
        else:
            r.append(f"ds_read_b128 {vr(base,4)}, v{vXA+ks} offset:{slot*16384}")
            for z in range(2): r.append(f"ds_read_b64_tr_b16 {vr(base+8+2*z,2)}, v{vWA} offset:{slot*16384+ks*4096+z*1024}")
            for z in range(2): r.append(f"ds_read_b64_tr_b16 {vr(base+12+2*z,2)}, v{vWA+1} offset:{slot*16384+ks*4096+z*1024}")
            r.append(f"ds_read_b128 {vr(base+4,4)}, v{vXA+ks} offset:{slot*16384+4096}")
        return r
    def mfmas(st, first):
        base = F0 + st * setsz
        m = []
        if mode == 'f':
            for t in range(4):
                c = "0" if first else vr(ACC+16*t,16)
                m.append(f"v_mfma_f32_32x32x16_bf16 {vr(ACC+16*t,16)}, {vr(base+4*t,4)}, {vr(base+16,4)}, {c}")
        else:
            for (x, w) in ((0,0),(0,1),(1,0),(1,1)):
                t = 2*x + w
                c = "0" if first else vr(ACC+16*t,16)
                X, W = vr(base+4*x,4), vr(base+8+4*w,4)
                A, B = (W, X) if mode == 'qk' else (X, W)
                m.append(f"v_mfma_f32_32x32x16_bf16 {vr(ACC+16*t,16)}, {A}, {B}, {c}")
        return m
    def last_chunk():
        sets = [0, 2, 7, 1]
        R = [reads(3, ks, sets[ks]) for ks in range(4)]
        rd = sum([r[:5] for r in R], []) + [r[5] for r in R]
        M = [mfmas(sets[ks], False) for ks in range(4)]
        a("s_waitcnt lgkmcnt(0)\ns_barrier")
        seq = [(m, None) for m in mfmas(1, False)]
        for ks in range(4): seq += [(M[ks][0], 5 if ks < 3 else 4), (M[ks][1], None)]
        for (m, w), k in zip(seq, (3, 3, 2, 2, 3, 2, 3, 2, 2, 2, 0, 0)):
            if w is not None: a(f"s_waitcnt lgkmcnt({w})")
            a(m)
            for _ in range(k): a(rd.pop(0))
        ep = []
        for n in range(4): ep += epi_frag(n) + ["s_mov_b64 exec, s[44:45]\n" + p1store(n) + "\ns_mov_b64 exec, -1"]
        a("s_waitcnt lgkmcnt(0)")
        for i, k in enumerate((0, 5, 5, 5, 6, 5, 5, 5)):
            a(M[i >> 1][2 + (i & 1)])
            if i == 0: a("s_nop 6")
            for _ in range(k): a(ep.pop(0))
    stamp(a, 1)
    a("s_barrier")
    stamp(a, 2)
    for r in reads(0, 0, 0): a(r)
    steps = [(c, ks) for c in range(8) for ks in range(4)]
    for n, (c, ks) in enumerate(steps):
        st = n & 1
        if AMAJ and mode != 'f' and n == 27:
            last_chunk(); break
        a("s_waitcnt lgkmcnt(0)")
        nxt = steps[n+1] if n + 1 < len(steps) else None
        if nxt and nxt[1] == 0:
            a("s_barrier")
            if CHST: stamp(a, 16 + 4 + nxt[0])
        rd = reads(nxt[0] & 3, nxt[1], st ^ 1) if nxt else []
        m = mfmas(st, n == 0)
        split = [3, 3, 0, 0] if len(rd) == 6 else [2, 2, 1, 0]
        for i in range(4):
            if M16X:
                import re
                g = re.match(r"\S+ v\[(\d+):\d+\], (\S+), (\S+), (\S+)", m[i])
                for u in range(2):
                    d = int(g.group(1)) + 8 * (n & 1) + 4 * u
                    a(f"v_mfma_f32_16x16x32_bf16 {vr(d,4)}, {g.group(2+u)}, {g.group(3-u)}, {'0' if n < 2 else vr(d,4)}")
            else: a(m[i])
            for _ in range(split[i]):
                if rd: a(rd.pop(0))
            if i == 2 and n in hooks: hooks[n](mode)
    stamp(a, 3)

def epi_frag(n):
    acc = 64 + 8 * n
    return [f"v_pk_mul_f32 {vr(acc+i,2)}, {vr(acc+i,2)}, s[32:33]" for i in range(0, 8, 2)] + \
           [f"v_cvt_pk_bf16_f32 v{vST+4*n+i}, v{acc+2*i}, v{acc+2*i+1}" for i in range(4)]
def p1store(n):
    return f"buffer_store_dwordx4 {vr(vST+4*n,4)}, v{vSA}, s[{sWS}:{sWS+3}], s{sST+n} offen sc1"

def lane_consts(a):
    a("""
    v_and_b32 v1, 63, v0
    v_and_b32 v2, 31, v0
    v_bfe_u32 v3, v0, 5, 1
    """)

def xaddr(a, dst, rowreg, base, tmp):
    a(f"""
    v_bfe_u32 v{tmp}, v{rowreg}, 1, 3
    v_xor_b32 v{tmp}, v{tmp}, v3
    v_lshlrev_b32 v{tmp}, 4, v{tmp}
    v_lshl_add_u32 v{dst}, v{rowreg}, 7, v{tmp}
    """)
    if base: a(f"v_add_u32 v{dst}, {base}, v{dst}")
    for ks in range(1, 4): a(f"v_xor_b32 v{dst+ks}, {ks*32}, v{dst}")

def phase1(a, P, store_flags="", loader_pre=None, loader_mid=None, loader_post=None, comp_pre=None, hooks={}, loader_late=None, qkv_post=None, pad=None):
    a(f"""
    s_cmp_ge_u32 s2, 256
    s_cbranch_scc1 {P}_end
    s_and_b32 s5, s2, 1
    s_lshl_b32 s5, s5, 3
    s_add_u32 s5, s5, {KA_HRE}
    s_cmp_ge_u32 s2, 192
    s_cselect_b32 s4, {KA_AX}, {KA_BX}
    s_cselect_b32 s5, s5, {KA_WQKV}
    s_load_dwordx2 s[{sX}:{sX+1}], s[0:1], s4
    s_load_dwordx2 s[{sW}:{sW+1}], s[0:1], s5
    s_load_dwordx2 s[64:65], s[0:1], {KA_WO}
    s_load_dwordx2 s[{sWS}:{sWS+1}], s[0:1], {KA_WS}
    s_load_dwordx2 s[68:69], s[0:1], {KA_DBG}
    v_lshrrev_b32 v1, 6, v0
    s_and_b32 s{sXCD}, s2, 7
    v_readfirstlane_b32 s{sWAVE}, v1
    s_lshr_b32 s3, s2, 3
    """)
    a(f"""
    s_and_b32 s4, s3, 3
    s_lshl_b32 s{sI}, s{sXCD}, 1
    s_and_b32 s{sI}, s{sI}, 12
    s_add_u32 s{sI}, s{sI}, s4
    s_lshr_b32 s4, s3, 2
    s_add_u32 s{sROT}, s3, s4
    s_and_b32 s4, s4, 1
    s_lshl_b32 s{sJ}, s{sXCD}, 1
    s_and_b32 s{sJ}, s{sJ}, 2
    s_cmp_ge_u32 s2, {CF}
    s_cselect_b32 s5, s{sJ}, 0
    s_add_u32 s{sROT}, s{sROT}, s5
    s_and_b32 s{sROT}, s{sROT}, {RMASK}
    s_add_u32 s{sJ}, s{sJ}, s4
    s_lshr_b32 s{sXCD}, s3, 3
    """)
    a(f"""
    s_mov_b32 s{sWS+2}, {WS_BYTES}
    s_mov_b32 s{sWS+3}, 0x20000
    s_mov_b32 s{sX+2}, 0x200000
    s_mov_b32 s{sX+3}, 0x20000
    s_mov_b32 s{sW+3}, 0x20000
    """)
    lane_consts(a)
    a(f"""
    s_cmp_lt_u32 s{sWAVE}, 4
    s_cbranch_scc1 {P}_comp
    """)
    sLW, sXO, sWO, sXQ, sWQ, sWC, sM, sCH = 13, 28, 29, 30, 31, 32, 33, 34
    a(f"""
    s_sub_u32 s{sLW}, s{sWAVE}, 4
    v_lshrrev_b32 v4, 3, v1
    v_and_b32 v5, 7, v1
    v_lshrrev_b32 v6, 4, v1
    v_xor_b32 v5, v5, v6
    v_lshlrev_b32 v5, 4, v5
    s_mov_b64 s[36:37], -1
    s_cmp_eq_u32 s{sXCD}, 3
    s_cbranch_scc1 {P}_ldf
    s_mov_b32 s{sW+2}, {512*3072}
    v_lshl_add_u32 v8, v4, 10, v5
    v_xor_b32 v9, 64, v8
    v_and_b32 v7, 15, v1
    v_lshlrev_b32 v10, 2, v6
    v_xor_b32 v7, v7, v10
    v_lshlrev_b32 v7, 4, v7
    v_mul_u32_u24 v10, 3072, v6
    v_add_u32 v10, v10, v7
    s_cmp_lt_u32 s{sXCD}, {2 * MIX}
    s_cselect_b32 s3, 896, 0
    s_cselect_b32 s4, 7, 8
    v_lshrrev_b32 v7, 7, v7
    v_mad_u32_u24 v10, v7, s3, v10
    v_mov_b32 v11, v10
    s_lshl_b32 s{sXO}, s{sI}, 17
    s_lshl_b32 s3, s{sLW}, 15
    s_add_u32 s{sXO}, s{sXO}, s3
    s_movk_i32 s{sXQ}, 0x2000
    s_lshl_b32 s{sWO}, s{sXCD}, 2
    s_add_u32 s{sWO}, s{sWO}, s{sJ}
    s_lshl_b32 s{sWO}, s{sWO}, s4
    s_mul_i32 s3, s{sLW}, {16*3072}
    s_add_u32 s{sWO}, s{sWO}, s3
    s_movk_i32 s{sWQ}, {4*3072}
    s_mov_b32 s{sWC}, {64*3072}
    s_mov_b32 s35, 0x{SEQ[::-1]}
    s_branch {P}_ldgo
    {P}_ldf:
    s_mov_b32 s{sW+2}, {512*1024}
    v_lshl_add_u32 v8, v4, 16, v5
    v_xor_b32 v9, 64, v8
    v_lshl_add_u32 v10, v4, 11, v5
    v_xor_b32 v11, 64, v10
    s_lshl_b32 s{sXO}, s{sI}, 2
    s_add_u32 s{sXO}, s{sXO}, s{sLW}
    s_lshl_b32 s{sXO}, s{sXO}, 10
    s_mov_b32 s{sXQ}, 0x80000
    s_and_b32 s{sWO}, s{sJ}, 1
    s_lshl_b32 s{sWO}, s{sWO}, 10
    s_lshl_b32 s3, s{sLW}, 16
    s_add_u32 s{sWO}, s{sWO}, s3
    s_movk_i32 s{sWQ}, 0x4000
    s_movk_i32 s{sWC}, 128
    s_mov_b32 s35, 0x{SEQF[::-1]}
    s_lshl_b32 s3, s{sLW}, 4
    s_add_u32 s3, s3, s{sJ}
    s_cmp_eq_u32 s3, 2
    s_cbranch_scc0 {P}_ldgo
    s_mov_b32 s36, 0xffffff00
    v_mov_b32 v12, 0xbf803f80
    v_lshlrev_b32 v13, 2, v2
    v_lshl_add_u32 v13, v3, 14, v13
    v_add_u32 v13, {LW}, v13
    ds_write_b32 v13, v12
    ds_write_b32 v13, v12 offset:32768
    {P}_ldgo:
    s_lshl_b32 s{sM}, s{sLW}, 12
    s_mov_b32 s{sCH}, s{sROT}
    s_waitcnt lgkmcnt(0)
    """)
    def issue(n, ntx=None):
        if ntx is None: ntx = NTX
        slot = n & 3
        a(f"""
        s_lshl_b32 s38, s{sCH}, 7
        s_add_u32 s38, s38, s{sXO}
        s_mul_i32 s39, s{sCH}, s{sWC}
        s_add_u32 s39, s39, s{sWO}
        s_bfe_u32 s{sCH}, s35, {(4 << 16) | 4 * ((n + 1) & 7)}
        s_xor_b32 s{sCH}, s{sCH}, s{sROT}
        """)
        for q in range(4):
            a(f"s_add_u32 m0, s{sM}, {LX + slot*16384 + q*1024}")
            a("s_nop 0" if q == 0 else f"s_add_u32 s39, s39, s{sWQ}")
            a(f"buffer_load_dwordx4 v{8 + (q&1)}, s[{sX}:{sX+3}], s38 offen {ntx} lds")
            a(f"s_add_u32 m0, s{sM}, {LW + slot*16384 + q*1024}")
            a(f"s_add_u32 s38, s38, s{sXQ}")
            if q == 0: a("s_mov_b64 exec, s[36:37]")
            a(f"buffer_load_dwordx4 v{10 + (q&1)}, s[{sW}:{sW+3}], s39 offen {NTW} lds")
            if q == 0: a("s_mov_b64 exec, -1")
    stamp(a, 13)
    if FLATE: a(f"s_cmp_eq_u32 s{sXCD}, 3\ns_cbranch_scc1 {P}_ld0")
    issue(0)
    a(f"{P}_ld0:")
    stamp(a, 14)
    loader_pre(sLW)
    loader_mid(sLW)
    def loop(n, depth, main):
        extra = 0
        for c in range(8):
            a(f"s_waitcnt vmcnt({8 * (n - 1 - c) + extra if c < 7 else 0})")
            a("s_barrier")
            while n < 8 and n <= c + depth:
                issue(n, None if main else NTF); n += 1
                if n == 8: loader_late(main); extra = 1
    a(f"s_cmp_eq_u32 s{sXCD}, 3\ns_cbranch_scc1 {P}_ldf2")
    issue(1)
    loop(2, DEPTH, True)
    a(f"{P}_ldpost:")
    if loader_post:
        loader_post(sLW)
    a(f"{P}_ldf2:")
    for k in range(0 if FLATE else 1, FINIT): issue(k, NTF)
    loop(FINIT, 3, False)
    a(f"s_branch {P}_ldpost")
    a(f"""
    {P}_comp:
    """)
    if comp_pre: comp_pre()
    a(f"""
    s_cmp_eq_u32 s{sXCD}, 3
    s_cbranch_scc1 {P}_cf
    s_and_b32 s28, s{sWAVE}, 1              ; wm
    s_lshr_b32 s29, s{sWAVE}, 1             ; wn
    """)
    a.c("W (tr) addresses")
    a(f"""
    v_bfe_u32 v12, v1, 2, 2                 ; r
    s_lshl_b32 s3, s29, 1
    v_xor_b32 v13, s3, v12
    v_lshlrev_b32 v13, 6, v13
    v_lshl_add_u32 v13, v12, 8, v13         ; r*256 + blk*64
    v_lshl_add_u32 v13, v3, 11, v13         ; + 8h rows
    v_bfe_u32 v14, v1, 4, 1
    v_lshl_add_u32 v13, v14, 5, v13
    v_and_b32 v14, 3, v1
    v_lshl_add_u32 v13, v14, 3, v13
    v_add_u32 v8, {LW}, v13
    v_xor_b32 v9, 64, v8
    s_lshl_b32 s3, s28, 6
    s_lshl_b32 s35, s{sJ}, 1
    s_add_u32 s35, s35, s29
    s_lshl_b32 s31, s{sXCD}, 2
    s_add_u32 s31, s31, s{sJ}
    s_cmp_lt_u32 s{sXCD}, {2 * MIX}
    s_cselect_b32 s35, s31, s35
    s_cselect_b32 s{sXCD}, s29, s{sXCD}
    s_lshl_b32 s30, s35, 15
    s_lshl_b32 s31, s{sXCD}, 21
    s_add_u32 s30, s30, s31
    s_and_b32 s31, s{sI}, 3
    s_lshl_b32 s32, s28, 2
    s_add_u32 s31, s31, s32
    s_lshr_b32 s32, s{sI}, 2
    s_lshr_b32 s{sCLS}, s31, 1
    s_min_u32 s{sCLS}, s{sCLS}, 2
    s_lshr_b32 s33, s{sI}, 1                ; Q: q block
    s_lshl_b32 s34, s{sI}, 1
    s_and_b32 s34, s34, 2
    s_add_u32 s34, s34, s28
    s_cmp_eq_u32 s{sXCD}, 0
    s_cselect_b32 s31, s33, s31
    s_cselect_b32 s32, s34, s32
    s_cselect_b32 s{sCLS}, 0, s{sCLS}
    s_lshl_b32 s31, s31, 18
    s_lshl_b32 s32, s32, 11
    s_add_u32 s30, s30, s31
    s_add_u32 s{sST}, s30, s32
    s_cmp_eq_u32 s{sXCD}, 2
    s_cselect_b32 s31, 512, 0
    s_cselect_b32 s32, 0, 0x2000
    s_add_u32 s31, s31, s32                 ; z stride
    s_xor_b32 s{sST+2}, s{sST}, 0x5000
    s_add_u32 s{sST+1}, s{sST}, s31
    s_add_u32 s{sST+3}, s{sST+2}, s31
    s_add_u32 s{sST+4}, s{sST}, 1024
    s_add_u32 s{sST+5}, s{sST+1}, 1024
    s_add_u32 s{sST+6}, s{sST+2}, 1024
    s_add_u32 s{sST+7}, s{sST+3}, 1024
    s_lshl_b32 s32, s{sXCD}, 4
    s_add_u32 s32, s32, s{sI}
    s_lshl_b32 s32, s32, 1
    s_add_u32 s32, s32, s28
    s_lshl_b32 s32, s32, 3
    s_add_u32 s32, s32, s35
    s_lshl_b32 s32, s32, 7
    s_add_u32 s{sFL}, s32, {WS_FL}
    s_cmp_eq_u32 s{sCLS}, 0
    s_cselect_b64 s[44:45], -1, 0
    s_cmp_eq_u32 s{sXCD}, 2
    s_cbranch_scc1 {P}_cv
    v_add_u32 v12, s3, v2
    """)
    xaddr(a, 4, 12, LX, 13)
    a(f"""
    v_lshlrev_b32 v{vSA}, 4, v1
    s_cmp_eq_u32 s{sXCD}, 0
    s_cselect_b32 s32, {hex(f32bits(QSCALE))}, 1.0
    s_mov_b32 s33, s32
    """)
    gemm_loop(a, P, 'qk', hooks)
    a(f"""
    s_branch {P}_epi
    {P}_cv:
    v_and_b32 v12, 0x13, v2
    v_bfe_u32 v13, v2, 2, 1
    v_lshl_add_u32 v12, v13, 3, v12
    v_bfe_u32 v13, v2, 3, 1
    v_lshl_add_u32 v12, v13, 2, v12
    v_add_u32 v12, s3, v12
    """)
    xaddr(a, 4, 12, LX, 13)
    a(f"""
    v_and_b32 v10, 15, v1
    v_lshlrev_b32 v10, 4, v10
    v_lshl_add_u32 v10, v3, 8, v10
    v_bfe_u32 v13, v1, 4, 1
    v_lshl_add_u32 v{vSA}, v13, 13, v10
    s_mov_b32 s32, {hex(f32bits(VSCALE))}
    s_mov_b32 s33, s32
    """)
    gemm_loop(a, P, 'v', hooks)
    def epi(now):
        for n in range(4 if AMAJ else 0, 8):
            for x in epi_frag(n): a(x)
            if now: a(p1store(n))
    a(f"{P}_epi:")
    pad(0)
    a(f"""
    s_cmp_eq_u32 s{sCLS}, 0
    s_nop {0 if AMAJ else 6}
    s_cbranch_scc0 {P}_epi_late
    """)
    epi(True)
    qkv_post()
    pad(1)
    a(f"{P}_epi_late:")
    epi(False)
    a(f"s_barrier\ns_branch {P}_p1done")
    a(f"{P}_cf:")
    xaddr(a, 4, 2, LX, 13)
    a(f"s_lshl_b32 s3, s{sWAVE}, 5\nv_add_u32 v12, s3, v2")
    xaddr(a, 8, 12, LW, 13)
    a.c("real DFT-32 matrix fragments in v[128:135]")
    a(f"""
    v_bfe_u32 v13, v2, 2, 1                 ; h'
    v_lshlrev_b32 v13, 3, v13
    v_lshrrev_b32 v14, 3, v2                ; j
    v_lshl_add_u32 v13, v14, 1, v13
    v_bfe_u32 v14, v2, 1, 1
    v_add_u32 v13, v13, v14                 ; slot
    v_and_b32 v14, 1, v2                    ; comp
    v_cmp_eq_u32 vcc, 1, v2
    v_cvt_f32_u32 v14, v14
    v_mul_f32 v14, 0xbe800000, v14          ; phase -0.25
    v_cndmask_b32 v13, v13, 16, vcc
    v_cndmask_b32 v14, v14, 0, vcc
    v_cvt_f32_u32 v13, v13
    v_mul_f32 v13, {hex(f32bits(1/32))}, v13
    v_cvt_f32_u32 v15, v3
    v_mul_f32 v15, 4.0, v15
    v_fma_f32 v14, v15, v13, v14
    """)
    for kk in range(2):
        for s in range(0, 8, 2):
            for u in range(2):
                s1 = 16*kk + 8*((s+u)//4) + (s+u) % 4
                a(f"s_mov_b32 s3, {hex(f32bits(float(s1)))}")
                a(f"v_fma_f32 v{136+u}, s3, v13, v14")
                a(f"v_cos_f32 v{136+u}, v{136+u}")
            a("s_nop 0")
            a(f"v_cvt_pk_bf16_f32 v{128+4*kk+s//2}, v136, v137")
    a(f"""
    v_lshlrev_b32 v14, 4, v12               ; idx*16
    s_mov_b32 s3, {8*G_SS}
    v_mad_u32_u24 v14, v3, s3, v14
    s_lshr_b32 s28, s{sJ}, 1
    s_mul_i32 s28, s28, {G_TS}
    v_add_u32 v14, s28, v14
    s_cmp_eq_u32 s{sJ}, 2
    s_cselect_b32 s28, 0, -1
    v_cmp_eq_u32 vcc, s28, v12
    v_subrev_u32 v15, {G_TS - 128*16}, v14
    s_and_b32 s30, s{sJ}, 1
    v_cndmask_b32 v{vSA}, v14, v15, vcc
    s_mul_i32 s30, s30, {G_PS}
    s_mul_i32 s31, s{sI}, {G_CS}
    s_add_u32 s30, s30, s31
    s_mov_b32 s{sCLS}, 3
    """)
    for i in range(8): a(f"s_add_u32 s{sST+i}, s30, {WS_G + i*G_SS}")
    if FDEL: hooks[-1]()
    gemm_loop(a, P, 'f', hooks)
    a("s_nop 9")
    for T in range(4):
        for i in range(8): a(f"v_cvt_pk_bf16_f32 v{16+8*T+i}, v{64+16*T+2*i}, v{64+16*T+2*i+1}")
    a("s_nop 1")
    for T in range(4): a(f"v_mfma_f32_32x32x16_bf16 {vr(64+16*T,16)}, v[128:131], {vr(16+8*T,4)}, 0")
    for T in range(4): a(f"v_mfma_f32_32x32x16_bf16 {vr(64+16*T,16)}, v[132:135], {vr(20+8*T,4)}, {vr(64+16*T,16)}")
    a("s_nop 11")
    for i in range(8):
        for T in range(4): a(f"v_cvt_pk_bf16_f32 v{vST+4*i+T}, v{64+16*T+2*i}, v{64+16*T+2*i+1}")
    a(f"{P}_p1done:")
```

```python
import sys
from asmlib import *
import asmlib, k1, attn
from k1 import f32bits, G_PS, G_CS, G_SS, G_TS, sWAVE, sWS, sXCD, sI, sJ, sFL, sCLS, p1store
from attn import vKA, vVA, vIDX, vVST, vT0, vT1, vOFF, vQ, vK, vV0, vV1, vS, vC, vO, LDS_K, LDS_V, LDS_ONES
NAME = "concat_heads__spectral_fnet__softmax_full_mha__prompt"
LDS_XB = LDS_ONES + 10240
LDS_FLG = LDS_XB + 16384
LDS_BYTES = LDS_FLG + 64
VGPRS = 224
vTW, vG, vWO = 88, 120, 88
sN = 48
sHEAD, sQB, sR, sJJ, sSLOT = 50, 51, 52, 53, 54
sKVO, sRUN, sM0 = 55, 56, 57
sOUT = 20
SHIFT = 100.0
VS_LOG2 = 32
ONES = (127 + VS_LOG2) << 7
SPIN_MAX = 0x40000
OPT = dict(codepf=1, prio=1, midpos=0, rm=3, order='gmi', depth=2, cf=192, two=2, mix=1, amaj=1, ntx='nt', seq='01234567', h=(20, 26), np=-1, seqf='04261537', flate=1, ntf='', finit=4, b1=99, xp=1, wide=1, bx=14, oa='sc1', ob='nt', pfl='sc1', sfl='sc1', early=0, warm=1, tsn=(17, 19), tf=(50, 62), tfl=60, bw=0, trace=0, pd=1, gap=0, bb=1, pe=((48, 56, 61), (49, 57, 63)), dry=3, ts=(2, 4), ta=(5, 10), tc=(6, 9))
vTA, vTD = 203, 204

def wg_roles(a):
    a(f"""
    s_and_b32 s58, s2, 7
    s_lshr_b32 s59, s2, 3
    s_lshl_b32 s{sHEAD}, s58, 2
    s_and_b32 s60, s59, 3
    s_add_u32 s{sHEAD}, s{sHEAD}, s60       ; head
    s_lshr_b32 s{sQB}, s59, 2               ; q block
    s_mov_b32 s{sJJ}, s{sQB}
    s_lshl_b32 s{sSLOT}, s58, 1
    s_and_b32 s61, s60, 1
    s_add_u32 s{sSLOT}, s{sSLOT}, s61       ; slot
    s_sub_u32 s61, 32, s{sSLOT}
    s_cmp_eq_u32 s{sSLOT}, 0
    s_cselect_b32 s61, 16, s61
    s_cmp_lt_u32 s60, 2
    s_cselect_b32 s{sR}, s{sSLOT}, s61      ; residue r'
    s_mov_b32 s{sFL}, 0
    """)

def tag_load(a):
    a(f"v_mov_b32 v{vTA}, 0\nglobal_load_dwordx2 {vr(vTD,2)}, v{vTA}, s[68:69] sc1")

def tag_use(a, L):
    a(f"""
    s_mov_b32 s62, 0
    {L}_spin:
    s_waitcnt vmcnt(0)
    v_readfirstlane_b32 s{sN}, v{vTD}
    v_readfirstlane_b32 s{sN+1}, v{vTD+1}
    s_cmp_lg_u32 s{sN}, 0
    s_cbranch_scc1 {L}_ok
    """)
    tag_load(a)
    a(f"""
    s_add_u32 s62, s62, 1
    s_cmp_lt_u32 s62, {SPIN_MAX}
    s_cbranch_scc1 {L}_spin
    {L}_ok:
    """)

def poll(a, P, tag, vaddr, vd, soff, mask=None, fl='sc1'):
    a(f"""
    s_mov_b32 s62, 0
    {P}_{tag}_spin:
    buffer_load_dwordx2 {vr(vd,2)}, v{vaddr}, s[{sWS}:{sWS+3}], {soff} offen {OPT['pfl']}
    s_waitcnt vmcnt(0)
    v_cmp_ne_u64 vcc, s[{sN}:{sN+1}], {vr(vd,2)}
    s_add_u32 s62, s62, 1
    {f"s_and_b64 vcc, vcc, {mask}" if mask else ""}
    s_cbranch_vccz {P}_{tag}_ok
    s_cmp_lt_u32 s62, {SPIN_MAX}
    s_cbranch_scc1 {P}_{tag}_spin
    {P}_{tag}_ok:
    """)

def utile(a, t, ins, late=()):
    cur, nxt = vS[t & 1], vS[(t + 1) & 1]
    tt = t & 7
    e = lambda i: a(f"v_exp_f32 v{cur+i}, v{cur+i}")
    pq, p0 = (8, 12) if t in late else (5, 10)
    def extra(k):
        for x in ins.get(k, []): a(x)
    e(0); e(1)
    a("s_waitcnt lgkmcnt(0)")
    if t > 0: a(f"v_smfmac_f32_32x32x32_bf16 {vr(vO,16)}, {vr(vV1,4)}, {vr(nxt+8,8)}, v{vIDX}")
    if t in late: a(f"ds_read_b128 {vr(vK,4)}, v{vKA} offset:{(t+1)*1024}")
    a(f"ds_read_b128 {vr(vV1,4)}, v{vVA} offset:{tt*1024+512}")
    extra(0)
    for i in range(2, pq): e(i)
    if t in late: a("s_waitcnt lgkmcnt(1)")
    if t < 63: a(f"v_mfma_f32_32x32x16_bf16 {vr(nxt,16)}, {vr(vK,4)}, {vr(vQ,4)}, {vr(vC,16)}")
    if t < 62 and t + 1 not in late: a(f"ds_read_b128 {vr(vK,4)}, v{vKA} offset:{(t+2)*1024}")
    extra(1)
    for i in range(pq, p0): e(i)
    a(f"v_smfmac_f32_32x32x32_bf16 {vr(vO,16)}, {vr(vV0,4)}, {vr(cur,8)}, v{vIDX}")
    if t < 63: a(f"ds_read_b128 {vr(vV0,4)}, v{vVA} offset:{(tt+1)*1024}")
    extra(2)
    for i in range(p0, 16): e(i)
    if tt == 7 and t < 63: a(f"v_add_u32 v{vVA}, v{vVST}, v{vVA}")

def kv_dma(c):
    ld = lambda o: f"buffer_load_dwordx4 v{vOFF}, s[{sWS}:{sWS+3}], s67 offen offset:{o} sc1 lds"
    k = [f"s_add_u32 m0, s{sM0}, {LDS_K + c*8192}", f"s_add_u32 s67, s{sKVO}, {WS_KF + c*0x40000}", ld(0)]
    v = [f"s_add_u32 m0, s{sM0}, {LDS_V + c*8192}", f"s_add_u32 s67, s{sKVO}, {WS_VF + c*0x40000}", ld(0)]
    return k, [ld(1024)], v, [ld(1024)]

vF2, vF2A, vSN = 216, 218, 220
vGE, vGB, vGO, vFA, vFD, vFG = 184, 185, 186, 187, 188, 190
def pad(a, P, k, bit=1, last=None):
    if OPT['dry'] & bit: a(f"{P}_pad{k}:\ns_cbranch_execz {last or f'{P}_pad{k+1}'}")
def walk(a, P, k, ret, bit=1):
    if OPT['dry'] & bit: a(f"s_mov_b64 exec, 0\ns_branch {P}_pad{k}\n{ret}:\ns_mov_b64 exec, -1")
def wo_store(): return ["s_mov_b64 exec, s[70:71]", f"buffer_store_dwordx4 v[192:195], v{vOFF}, s[{sWS}:{sWS+3}], s47 offen sc1", "s_mov_b64 exec, -1"]
def f2load(): return f"buffer_load_dwordx2 {vr(vF2,2)}, v{vF2A}, s[{sWS}:{sWS+3}], 0 offen sc1"
def late_stores(a, P, cls):
    a(f"s_cmp_lg_u32 s{sCLS}, {cls}\ns_cbranch_scc1 {P}_nost{cls}")
    for n in range(8): a(p1store(n))
    a(f"{P}_nost{cls}:")
def wave_flag(a):
    a(f"""
    s_mov_b64 exec, {0xffff if OPT['wide'] else 1}
    s_waitcnt vmcnt(0)
    buffer_store_dwordx2 {vr(vFD,2)}, v{vFG}, s[{sWS}:{sWS+3}], s{sFL} offen {OPT['sfl']}
    s_mov_b64 exec, -1
    """)

def attn_role(a, P, role):
    BX = OPT['bx']
    B1, TS, TA, (TP, TC) = OPT['b1'], OPT['ts'], OPT['ta'], OPT['tc']
    DM = {2: (TC, TC), 3: (TC+1, TC+1), 4: (18, 19), 5: (20, 21), 6: (22, 23), 7: (24, 25)}
    fl = lambda va: f"buffer_load_dwordx2 {vr(vFD,2)}, v{va}, s[{sWS}:{sWS+3}], 0 offen {OPT['pfl']}"
    def check(tag, va, mask=None):
        a(f"s_waitcnt vmcnt(0)\nv_cmp_ne_u64 vcc, s[{sN}:{sN+1}], {vr(vFD,2)}\ns_nop 0")
        if mask: a(f"s_and_b64 vcc, vcc, {mask}")
        a(f"s_cbranch_vccz {P}_{tag}_ok")
        poll(a, P, tag, va, vFD, "0", mask)
    for t in range(64):
        ins = {}
        add = lambda k, l: ins.setdefault(k, []).extend(l)
        if role == 'B':
            if t == TP or t == BX: add(0, [fl(vFG)])
            if t == TC:
                check("c2", vFG, 0xff << 16)
                stamp(a, 1)
            if t == 18: check("c4", vFG)
            for c, (tk, tv) in DM.items():
                d = kv_dma(c)
                if t == tk and t == tv: add(0, d[0] + d[1]); add(2, d[2] + d[3])
                elif t == tk: add(0, d[0]); add(2, d[1])
                elif t == tv: add(0, d[2]); add(2, d[3])
            if t == 26: add(0, [fl(vFA)])
            if t == 30: check("all", vFA)
            if t == B1: a("s_waitcnt vmcnt(0)")
        else:
            for cls in (2, 3):
                if t == TS[cls-2]: late_stores(a, P, cls)
            for cls in (1, 2):
                if t == TA[cls-1]:
                    a(f"s_cmp_lg_u32 s{sCLS}, {cls}\ns_cbranch_scc1 {P}_nofl{cls}")
                    wave_flag(a)
                    stamp(a, 6)
                    a(f"{P}_nofl{cls}:")
        if t == BX or (t == 30 and role == 'A'): a("s_waitcnt vmcnt(0)")
        if t in (B1, BX, 30): a("s_barrier")
        if t == BX: stamp(a, 2 if role == 'B' else 13)
        if t == 30: stamp(a, 3 if role == 'B' else 14)
        if role == 'A' and t == BX:
            add(0, [f"s_mov_b64 exec, s[70:71]",
                    f"buffer_store_dwordx2 {vr(vFD,2)}, v{vFA}, s[{sWS}:{sWS+3}], 0 offen sc1",
                    "s_mov_b64 exec, -1"])
        if role == 'A' and 30 <= t < 58:
            for k, i in ((0, t - 30),) + (((2, t - 2),) if t < 34 else ()):
                add(k, [f"s_add_u32 s58, s63, {i * 0x400}",
                        f"buffer_load_dwordx4 {vr(vWO+4*i,4)}, v{vOFF}, s[{sWS}:{sWS+3}], s58 offen sc1"])
        if t == OPT['tsn'][role == 'B']:
            add(2, [f"buffer_store_dwordx4 {vr(vSN,4)}, v{vOFF}, s[{sWS}:{sWS+3}], s72 offen sc1"])
        if role == 'A' and t in OPT['tf']:
            add(2, [f2load()])
        if role == 'B' and t == OPT['two']: add(2, wo_store())
        if role == 'B' and t == 31:
            add(2, [f"v_mov_b32 v{vSN}, s{sN}", f"v_mov_b32 v{vSN+1}, s{sN+1}"])
        if role == 'B' and t == OPT['tfl']:
            add(2, ["; early hint for the O fragments of waves w-4 and w: readers check the data for the fill words",
                    "s_mov_b32 exec_hi, 0",
                    f"buffer_store_dwordx2 {vr(vSN,2)}, v{vF2A}, s[{sWS}:{sWS+3}], s73 offen sc1",
                    "s_mov_b32 exec_hi, -1"])
        if role == 'B' and 32 <= t < 48:
            i = t - 32
            kq, ty, par = i >> 2, (i >> 1) & 1, i & 1
            va = vGO if par else (vGB if ty else vGE)
            add(0, [f"s_add_u32 s58, s63, {ty*G_TS + 2*kq*G_CS}",
                    f"buffer_load_dwordx4 {vr(vG+4*i,4)}, v{va}, s[{sWS}:{sWS+3}], s58 offen sc1"])
        if OPT['prio']:
            pr = {0: 3, 3: 2, 5: 1, 6: 3, 10: 2, 12: 1} if B1 == 6 else {0: 3, BX-6: 2, BX-2: 1}
            pr.update({BX: 3, 23: 2, 27: 1, 30: 3})
            pr.update(zip(OPT['pe'][role == 'B'], (2, 1, 0)))
            if t in pr: add(1, [f"s_setprio {pr[t]}"])
        utile(a, t, ins, (15,) if BX == 15 else ())
    if role == 'A': a(f"s_branch {P}_attn_done")

def gen_kernel(name):
    a = Asm(); P = "F"
    stamp_init(a)
    vWG = 32
    def gather(sLW):
        a.c("gather one Wo fragment (loader waves 0,1)")
        a(f"""
        s_mov_b32 s66, 0x80000
        s_mov_b32 s67, 0x20000
        s_lshl_b32 s63, s2, 1
        s_add_u32 s63, s63, s{sLW}
        s_cmp_ge_u32 s{sLW}, 2
        s_cbranch_scc1 {P}_nowo
        s_and_b32 s58, s63, 31
        s_lshl_b32 s58, s58, 14
        s_lshr_b32 s59, s63, 5
        s_lshl_b32 s59, s59, 6
        s_add_u32 s58, s58, s59
        v_and_b32 v12, 3, v2
        v_lshrrev_b32 v13, 3, v2
        v_lshl_add_u32 v12, v13, 2, v12
        v_bfe_u32 v13, v2, 2, 1
        v_lshl_add_u32 v12, v13, 4, v12
        v_lshlrev_b32 v12, 1, v12
        v_lshl_add_u32 v12, v3, 12, v12
        s_add_u32 s59, s58, 0x2000
        """)
        for s in range(8):
            a(f"buffer_load_ushort v{vWG + s}, v12, s[64:67], s{58 + s//4} offen offset:{(s&3)*1024}")
        a(f"{P}_nowo:")
    def loader_mid(sLW):
        wg_roles(a)
        a.c("ones region (rows 16 and 20 of the V operand)")
        a(f"""
        v_and_b32 v12, 11, v1
        v_cmp_eq_u32 vcc, 0, v12
        v_mov_b32 v13, 0x{ONES:04x}{ONES:04x}
        v_subrev_u32 v12, 0x100, v0
        v_cndmask_b32 v20, 0, v13, vcc
        v_lshlrev_b32 v12, 4, v12
        v_mov_b32 v21, v20
        v_mov_b32 v22, v20
        v_mov_b32 v23, v20
        v_add_u32 v12, {LDS_ONES}, v12
        ds_write_b128 v12, v[20:23]
        ds_write_b128 v12, v[20:23] offset:4096
        ds_write_b128 v12, v[20:23] offset:6144
        v_and_b32 v12, 15, v1
        v_lshlrev_b32 v12, 2, v12
        v_add_u32 v12, {LDS_FLG}, v12
        v_mov_b32 v13, 0
        ds_write_b32 v12, v13
        """)
        a.c("sequence-DFT twiddles of this wave's FNet job, kept in registers")
        a(f"""
        s_and_b32 s58, s{sLW}, 1                ; mt
        s_lshr_b32 s59, s{sLW}, 1               ; kh
        s_lshl_b32 s60, s59, 4
        v_xor_b32 v12, s60, v2
        s_lshl_b32 s60, s58, 10
        s_add_u32 s60, s60, s{sR}
        v_lshl_add_u32 v12, v12, 5, s60         ; t
        s_lshl_b32 s60, s59, 5
        v_lshl_add_u32 v13, v3, 2, s60          ; first s2
        v_mul_u32_u24 v13, v12, v13
        v_lshlrev_b32 v14, 2, v12               ; 4t
        s_mov_b32 s40, 1.0                      ; p
        s_mov_b32 s41, 0                        ; q
        s_mov_b32 s42, -1.0                     ; -sigma
        s_cmp_gt_u32 s{sR}, 16
        s_cselect_b32 s42, 1.0, s42
        s_cmp_eq_u32 s{sSLOT}, 0
        s_cselect_b32 s42, 0, s42
        s_cmp_eq_u32 s{sR}, 16
        s_cselect_b32 s40, 0, s40
        s_cselect_b32 s41, 1.0, s41
        s_cmp_ge_u32 s{sJJ}, 4
        s_cselect_b32 s46, 0x80000000, 0
        s_xor_b32 s43, s40, s46                 ; mu*p
        s_xor_b32 s44, s41, s46                 ; mu*q
        s_xor_b32 s45, s42, s46
        s_xor_b32 s45, s45, 0x80000000          ; mu*sigma
        """)
        for kq in range(4):
            for T in range(4):
                a(f"""
                v_and_b32 v24, 0x7ff, v13
                v_cvt_f32_u32 v24, v24
                v_mul_f32 v24, {hex(f32bits(1/2048))}, v24
                v_cos_f32 v25, v24
                v_sin_f32 v26, v24
                v_add_u32 v13, v13, v12
                v_mul_f32 v27, s40, v25
                v_mul_f32 v28, s42, v26
                v_fmac_f32 v28, s41, v25
                v_cvt_pk_bf16_f32 v{vTW + 8*kq + T}, v27, v28
                v_mul_f32 v27, s43, v26
                v_mul_f32 v28, s45, v25
                v_fmac_f32 v28, s44, v26
                v_cvt_pk_bf16_f32 v{vTW + 8*kq + 4 + T}, v27, v28
                """)
            if kq < 3: a("v_add_u32 v13, v13, v14")
    def loader_post(sLW):
        tag_use(a, f"{P}_tagL")
        a(f"""
        s_lshl_b32 s47, s63, 10
        s_add_u32 s47, s47, {WS_WOF}
        s_cmp_ge_u32 s{sLW}, 2
        s_cselect_b64 s[70:71], 0, -1
        v_lshl_or_b32 v192, v{vWG+1}, 16, v{vWG}
        v_lshl_or_b32 v193, v{vWG+3}, 16, v{vWG+2}
        v_lshl_or_b32 v194, v{vWG+5}, 16, v{vWG+4}
        v_lshl_or_b32 v195, v{vWG+7}, 16, v{vWG+6}
        """)
        a.c("role B set-up")
        a(f"""
        s_lshl_b32 s58, s{sJJ}, 5
        v_add_u32 v24, s58, v2                  ; 32J+n
        v_sub_u32 v26, 0x100, v24
        v_sub_u32 v27, 0xff, v24
        s_cmp_ge_u32 s{sJJ}, 4
        s_cselect_b64 vcc, -1, 0
        v_cndmask_b32 v26, v24, v26, vcc
        v_cndmask_b32 v27, v24, v27, vcc
        v_and_b32 v28, 0x7f, v26
        v_cmp_eq_u32 vcc, 0, v28
        v_mul_u32_u24 v25, {G_CS}, v3
        v_lshl_add_u32 v{vGE}, v26, 4, v25
        v_lshl_add_u32 v{vGO}, v27, 4, v25
        v_add_u32 v{vGO}, {G_PS}, v{vGO}
        v_mov_b32 v28, 0x40000000
        v_cndmask_b32 v{vGB}, v{vGE}, v28, vcc
        v_subrev_u32 v{vFA}, 0x100, v0
        v_lshlrev_b32 v{vFA}, 7, v{vFA}
        v_add_u32 v{vFA}, {WS_F1}, v{vFA}
        s_mul_i32 s63, s{sSLOT}, {G_SS}
        s_lshr_b32 s58, s{sLW}, 1               ; kh
        s_mul_i32 s58, s58, {8*G_CS}
        s_add_u32 s63, s63, s58
        s_add_u32 s63, s63, {WS_G}
        """)
        flag_addr(sLW)
        a(f"""
        s_lshl_b32 s{sM0}, s{sLW}, 11
        s_and_b32 s58, s{sHEAD}, 2
        s_xor_b32 s58, s58, s{sLW}
        s_lshl_b32 s58, s58, 11
        s_lshl_b32 s{sKVO}, s{sHEAD}, 13
        s_add_u32 s{sKVO}, s{sKVO}, s58
        s_lshl_b32 s61, s{sQB}, 18
        s_add_u32 s61, s61, s{sKVO}             ; Q fragments
        v_mov_b32 v{k1.vSA}, 0
        v_and_b32 v24, 15, v1
        v_lshlrev_b32 v24, 3, v24
        v_bfe_u32 v25, v1, 4, 1
        v_lshl_add_u32 v{vF2A}, v25, 14, v24
        """)
        common_setup()
        if OPT['two'] < 0:
            for x in wo_store(): a(x)
        a.c("no polling while this workgroup's urgent stores are on their way")
        a(f"s_cmp_eq_u32 s{sXCD}, 3\ns_cbranch_scc1 {P}_nopre\ns_barrier\n{P}_nopre:")
        if OPT['xp']:
            a("s_mov_b64 exec, 0xf8000")
            D = OPT['pd']
            if D == 1: poll(a, P, "h1", vFG, vFD, "0")
            else:
                ld = lambda k: a(f"buffer_load_dwordx2 {vr(40+2*k,2)}, v{vFG}, s[{sWS}:{sWS+3}], 0 offen sc1")
                for k in range(D - 1):
                    ld(k)
                    for _ in range(OPT['gap']): a("s_nop 15")
                a(f"s_mov_b32 s62, 0\n{P}_h1_spin:")
                for k in range(D):
                    ld((k + D - 1) % D)
                    a(f"s_waitcnt vmcnt({D-1})\nv_cmp_ne_u64 vcc, s[{sN}:{sN+1}], {vr(40+2*k,2)}\ns_add_u32 s62, s62, 1\ns_cbranch_vccz {P}_h1_ok")
                a(f"s_cmp_lt_u32 s62, {SPIN_MAX}\ns_cbranch_scc1 {P}_h1_spin\n{P}_h1_ok:")
            a("s_mov_b64 exec, -1")
        else: poll(a, P, "h1", vFG, vFD, "0", 0xfffff)
        stamp(a, 6)
        d0, d1 = kv_dma(0), kv_dma(1)
        for x in d0[0] + d0[1]: a(x)
        a(f"s_add_u32 m0, s{sM0}, {LDS_XB}\ns_nop 0")
        for o in (0, 1024): a(f"buffer_load_dwordx4 v{vOFF}, s[{sWS}:{sWS+3}], s61 offen offset:{o} sc1 lds")
        for x in d0[2] + d0[3] + sum(d1, []): a(x)
        if OPT['early']: a("s_barrier")
        a(f"s_mov_b32 s{sCLS}, 0\ns_waitcnt vmcnt({4 if OPT['b1'] == 6 else 0})\ns_branch {P}_b2")
    def flag_addr(sLW):
        a(f"""
        v_bfe_u32 v24, v1, 1, 2
        v_bfe_u32 v25, v1, 3, 1
        v_lshl_add_u32 v24, v24, 1, v25
        v_and_b32 v25, 1, v1
        v_lshl_add_u32 v24, v25, 5, v24
        s_lshl_b32 s58, s{sLW}, 3
        s_add_u32 s58, s58, 32
        v_add_u32 v24, s58, v24
        s_lshl_b32 s58, s{sQB}, 2
        s_add_u32 s58, s58, s{sLW}
        v_mov_b32 v25, s58
        s_mov_b32 vcc_lo, 0xffff0000
        s_mov_b32 vcc_hi, 0
        v_cndmask_b32 v24, v25, v24, vcc
        s_lshr_b32 s58, s{sHEAD}, 2
        s_lshl_b32 s58, s58, 7
        s_add_u32 s58, s58, {WS_FL}
        v_lshl_add_u32 v{vFG}, v24, 10, s58
        """)
    def common_setup():
        a(f"""
        s_load_dwordx2 s[{sOUT}:{sOUT+1}], s[0:1], {KA_OUT}
        s_mov_b32 s{sOUT+2}, 0x400000
        s_mov_b32 s{sOUT+3}, 0x20000
        v_lshlrev_b32 v{vOFF}, 4, v1
        v_lshlrev_b32 v28, 4, v0
        v_add_u32 v28, {LDS_XB}, v28
        v_mov_b32 v{vIDX}, 0xdddd
        """)
        attn.addr_setup(a)
        for i in range(16): a(f"v_mov_b32 v{vO+i}, 0")
        for i in range(4): a(f"v_mov_b32 v{vSN+i}, -1")
    def flag_regs():
        a(f"v_mov_b32 v{vFD}, s{sN}\nv_mov_b32 v{vFD+1}, s{sN+1}\nv_lshlrev_b32 v{vFG}, 3, v1")
    def qkv_post():
        stamp(a, 4)
        wave_flag(a)
        stamp(a, 5)
        a(f"s_barrier\ns_branch {P}_p1done")
    def comp_pre():
        wg_roles(a)
        a("s_mov_b64 s[46:47], 0")
        if OPT['warm']: flag_addr(sWAVE)
        a("s_waitcnt lgkmcnt(0)")
        if OPT['warm']:
            a.c("first touch of the flag lines that the loader waves poll later")
            a(f"buffer_load_dwordx2 {vr(vFD,2)}, v{vFG}, s[{sWS}:{sWS+3}], 0 offen {OPT['pfl']}")
        a(f"""
        s_cmp_lg_u32 s{sWAVE}, 0
        s_cbranch_scc1 {P}_cp1
        """)
        if OPT['codepf']:
            a.c("pull this kernel's code into L2 (each workgroup a slice)")
            a(f"""
            s_getpc_b64 s[58:59]
            {P}_pc:
            s_lshr_b32 s60, s2, 3
            s_lshl_b32 s60, s60, 4
            v_and_b32 v12, 15, v1
            v_add_u32 v12, s60, v12
            v_lshlrev_b32 v12, 7, v12
            v_min_u32 v12, {P}_end-{P}_pc, v12
            v_mov_b32 v13, s59
            v_add_co_u32 v12, vcc, s58, v12
            s_nop 1
            v_addc_co_u32 v13, vcc, 0, v13, vcc
            global_load_dword v200, v[12:13], off
            """)
        a(f"""
        s_cmp_lg_u32 s2, 0
        s_cbranch_scc1 {P}_cp1
        """)
        a.c("launch tag for the hand-off flags: never equal to a tag of an earlier launch")
        a(f"""
        s_memrealtime s[58:59]
        s_waitcnt lgkmcnt(0)
        s_or_b32 s58, s58, 1
        v_mov_b32 v206, s58
        v_mov_b32 v207, s59
        s_mov_b32 s46, 1
        {P}_cp1:
        """)
        if OPT['np'] < 0: publish('qk')
    def publish(m):
        if m == 'qk':
            a(f"""
            v_mov_b32 v{vTA}, 0
            s_mov_b64 exec, s[46:47]
            global_store_dwordx2 v{vTA}, v[206:207], s[68:69] sc1
            s_mov_b64 exec, -1
            """)
    def fnet_wait():
        a.c("the FNet tiles are not urgent: they start once workgroup 0 is under way and has published the tag")
        a(f"s_cmp_lg_u32 s{sWAVE}, 0\ns_cbranch_scc1 {P}_fgo")
        tag_load(a)
        tag_use(a, f"{P}_tagF")
        a(f"{P}_fgo:")
    k1.VSCALE = 2.0 ** VS_LOG2
    k1.MIDPOS = OPT["midpos"]; k1.RMASK = OPT["rm"]; k1.CF = OPT["cf"]; k1.FLATE = OPT["flate"]; k1.NTF = OPT["ntf"]; k1.FINIT = OPT["finit"]; k1.FDEL = OPT["np"] >= 0; k1.SEQF = OPT["seqf"]; k1.AMAJ = OPT["amaj"]; k1.MIX = OPT["mix"]; k1.M16X = OPT.get("m16x", 0); k1.NTX = OPT.get("ntx", ""); k1.NTW = OPT.get("ntw", ""); k1.CHST = OPT.get("chst", 0); k1.SEQ = OPT["seq"]; k1.ORDER = OPT["order"]; k1.DEPTH = OPT["depth"]
    h = OPT['h']
    hooks = {h[0]: lambda m: tag_load(a), h[1]: lambda m: (tag_use(a, f"{P}_tag{m}"), flag_regs())}
    if OPT['np'] >= 0: hooks.update({OPT['np']: publish, -1: fnet_wait})
    k1.phase1(a, P, "sc1", gather, loader_mid, loader_post, comp_pre, hooks, lambda main: (tag_load(a), main and walk(a, P, 10, f'{P}_ret2', 2)), qkv_post, lambda k: pad(a, P, 10 + k, 2, f'{P}_ret2' if k == 1 else None))
    a.c("role A set-up")
    a(f"""
    s_lshl_b32 s58, s2, 7
    s_add_u32 s58, s58, {WS_F1}
    v_add_u32 v{vFA}, s58, v{vFG}
    v_mov_b32 v{vGE}, 0
    v_mov_b32 v{vGB}, 0
    v_mov_b32 v{vGO}, 0
    s_cmp_eq_u32 s{sWAVE}, 0
    s_cselect_b32 s70, 0xffff, 0
    s_mov_b32 s71, 0
    s_and_b32 s63, s{sHEAD}, 3
    s_lshl_b32 s63, s63, 2
    s_add_u32 s63, s63, s{sWAVE}            ; n tile
    s_lshl_b32 s63, s63, 15
    s_add_u32 s63, s63, {WS_WOF}
    s_lshl_b32 s58, s{sQB}, 3
    s_lshr_b32 s59, s{sHEAD}, 2
    s_add_u32 s58, s58, s59
    s_lshl_b32 s58, s58, 2
    s_add_u32 s58, s58, s{sWAVE}
    s_lshl_b32 s58, s58, 10
    s_add_u32 s58, s58, {WS_F2}
    v_and_b32 v{vF2A}, 7, v1
    v_lshl_add_u32 v{vF2A}, v{vF2A}, 7, s58
    """)
    common_setup()
    walk(a, P, 0, f"{P}_ret1")
    if OPT['early']:
        a("s_barrier")
        late_stores(a, P, 1)
    a(f"""
    {P}_b2:
    s_waitcnt lgkmcnt(0)
    s_barrier
    """)
    stamp(a, 7)
    a(f"ds_read_b128 {vr(vQ,4)}, v28")
    a(f"""
    ds_read_b128 {vr(vK,4)}, v{vKA}
    ds_read_b128 {vr(vV1,4)}, v{vKA} offset:1024
    ds_read_b128 {vr(vV0,4)}, v{vVA}
    """)
    if not OPT['early']: late_stores(a, P, 1)
    a(f"""
    s_waitcnt lgkmcnt(2)
    v_mfma_f32_32x32x16_bf16 {vr(vS[0],16)}, {vr(vK,4)}, {vr(vQ,4)}, 0
    s_waitcnt lgkmcnt(1)
    v_mfma_f32_32x32x16_bf16 {vr(vS[1],16)}, {vr(vV1,4)}, {vr(vQ,4)}, 0
    s_nop 10
    """)
    attn.max16(a, vT0, vS[0], True)
    attn.max16(a, vT0, vS[1], False)
    attn.set_c(a, SHIFT)
    a(f"""
    s_nop 1
    v_mfma_f32_32x32x16_bf16 {vr(vS[0],16)}, {vr(vK,4)}, {vr(vQ,4)}, {vr(vC,16)}
    ds_read_b128 {vr(vK,4)}, v{vKA} offset:1024
    s_mov_b32 s65, 0
    s_lshl_b32 s58, s{sQB}, 3
    s_add_u32 s58, s58, s{sWAVE}
    s_lshl_b32 s58, s58, 5
    s_add_u32 s58, s58, s{sHEAD}
    s_lshl_b32 s73, s58, 7
    s_add_u32 s73, s73, {WS_F2 - 0x4000}
    s_lshl_b32 s72, s58, 10
    s_add_u32 s72, s72, {WS_OF}
    s_cmp_lt_u32 s{sWAVE}, 4
    s_cbranch_scc0 {P}_roleB
    """)
    attn_role(a, P, 'A')
    a(f".p2align 6\n{P}_roleB:")
    pad(a, P, 0)
    if OPT['dry'] & 1: a("s_nop 0")
    attn_role(a, P, 'B')
    a(f"{P}_attn_done:")
    pad(a, P, 1)
    a(f"""
    s_waitcnt lgkmcnt(0)
    v_smfmac_f32_32x32x32_bf16 {vr(vO,16)}, {vr(vV1,4)}, {vr(vS[1]+8,8)}, v{vIDX}
    s_cmp_lg_u32 s65, 0
    s_nop 9
    s_cbranch_scc1 {P}_fin
    """)
    a.c("run-time check of the max stand-in: row sum below 2^120 and all accumulators finite")
    a(f"v_add_f32 v{vT0}, abs(v{vO}), abs(v{vO+1})")
    for i in range(2, 8): a(f"v_add_f32 v{vT0}, v{vT0}, abs(v{vO+i})")
    a(f"""
    v_mov_b32 v{vT1}, 0x7b800000
    v_cmp_nlt_f32 vcc, v{vO+8}, v{vT1}
    v_mov_b32 v{vT1}, 0x7f000000
    v_cmp_nlt_f32 s[60:61], v{vT0}, v{vT1}
    s_nop 1
    s_or_b64 vcc, vcc, s[60:61]
    s_cbranch_scc1 {P}_fallback
    {P}_fin:
    v_rcp_f32 v{vT0}, v{vO+8}
    s_nop 0
    """)
    for i in range(8): a(f"v_mul_f32 v{vO+i}, v{vO+i}, v{vT0}")
    for i in range(4): a(f"v_cvt_pk_bf16_f32 v{vO+i}, v{vO+2*i}, v{vO+2*i+1}")
    for i in range(4): a(f"v_min_u32 v{vO+i}, -2, v{vO+i}")
    a(f"buffer_store_dwordx4 {vr(vO,4)}, v{vOFF}, s[{sWS}:{sWS+3}], s72 offen sc1")
    stamp(a, 8)
    a(f"""
    v_and_b32 v2, 31, v0
    v_bfe_u32 v3, v0, 5, 1
    s_cmp_lt_u32 s{sWAVE}, 4
    s_cbranch_scc1 {P}_tailA
    """)
    ACC = 24
    pad(a, P, 2)
    a("s_waitcnt vmcnt(2)")
    if OPT['bb']: a("s_barrier")
    for kq in range(4):
        for ty in range(2):
            for par in range(2):
                i = 4*kq + 2*ty + par
                c = "0" if kq == 0 and ty == 0 else vr(ACC+16*par,16)
                a(f"v_mfma_f32_32x32x16_bf16 {vr(ACC+16*par,16)}, {vr(vTW+8*kq+4*ty,4)}, {vr(vG+4*i,4)}, {c}")
    a(f"""
    s_sub_u32 s60, s{sWAVE}, 4
    s_lshl_b32 s61, s60, 12
    s_add_u32 s61, s61, {LDS_XB}
    v_add_u32 v11, s61, v{vOFF}
    s_xor_b32 s61, s60, 2
    s_lshl_b32 s61, s61, 12
    s_add_u32 s61, s61, {LDS_XB}
    v_add_u32 v12, s61, v{vOFF}
    s_lshl_b32 s61, s{sWAVE}, 2
    s_add_u32 s61, s61, {LDS_FLG + 16}
    v_mov_b32 v8, s61
    v_xor_b32 v9, 8, v8
    v_lshlrev_b32 v4, 2, v2
    v_lshl_add_u32 v4, v3, 18, v4
    s_and_b32 s61, s60, 1
    s_lshl_b32 s61, s61, 1
    s_lshr_b32 s60, s60, 1
    s_add_u32 s61, s61, s60
    s_lshl_b32 s61, s61, 9
    s_add_u32 s61, s61, s{sR}
    s_lshl_b32 s61, s61, 11
    s_lshl_b32 s60, s{sJJ}, 7
    s_add_u32 s61, s61, s60
    """)
    for q in range(4):
        a(f"ds_write_b128 v11, {vr(ACC + 16*(q>>1) + 8 + 4*(q&1), 4)} offset:{q*1024}")
    if OPT['bb']:
        a(f"""
        ds_write_b32 v8, v8
        {P}_xwait:
        ds_read_b32 v10, v9
        s_waitcnt lgkmcnt(0)
        v_cmp_eq_u32 vcc, 0, v10
        s_nop 0
        s_cbranch_vccnz {P}_xwait
        """)
    else: a("s_waitcnt lgkmcnt(0)\ns_barrier")
    for q in range(4): a(f"ds_read_b128 {vr(56 + 4*q, 4)}, v12 offset:{q*1024}")
    a("s_waitcnt lgkmcnt(0)")
    for r in range(8):
        a(f"v_add_f32 v{ACC+r}, v{ACC+r}, v{56+r}")
        a(f"v_add_f32 v{ACC+16+r}, v{ACC+16+r}, v{64+r}")
        a(f"v_cvt_pk_bf16_f32 v{72+r}, v{ACC+r}, v{ACC+16+r}")
    if OPT['bw']:
        a.c("keep these stores out of the way of the O fetches")
        a(f"""
        v_and_b32 v9, 7, v0
        v_lshlrev_b32 v9, 2, v9
        v_add_u32 v9, {LDS_FLG}, v9
        {P}_owait:
        ds_read_b32 v10, v9
        s_waitcnt lgkmcnt(0)
        v_cmp_eq_u32 vcc, 0, v10
        s_nop 0
        s_cbranch_vccnz {P}_owait
        """)
    for r in range(8):
        a(f"s_add_u32 s60, s61, {(8*(r//4) + r%4) * 32 * 2048}")
        a(f"buffer_store_dword v{72+r}, v4, s[{sOUT}:{sOUT+3}], s60 offen {OPT['oa']}")
    a(f"s_branch {P}_done")
    ACC, LD, BUF = 24, 40, 72
    sPEND, sDONE, sM = 64, 66, 67
    def loads(k):
        for i in range(4): a(f"buffer_load_dwordx4 {vr(LD+16*k+4*i,4)}, v{vOFF}, s[{sWS}:{sWS+3}], s{58+k} offen offset:{i*1024} sc1")
    pad(a, P, 3)
    a(f"""
    {P}_tailA:
    s_lshl_b32 s60, s{sQB}, 3
    s_lshr_b32 s61, s{sHEAD}, 2
    s_add_u32 s60, s60, s61
    s_lshl_b32 s58, s60, 15
    s_lshl_b32 s61, s{sWAVE}, 13
    s_add_u32 s58, s58, s61
    s_add_u32 s58, s58, {WS_OF}             ; this wave fetches heads 8w .. 8w+7, two groups of four
    s_add_u32 s59, s58, 4096
    """)
    def flags(L):
        a(f"""
        v_cmp_ne_u64 vcc, s[{sN}:{sN+1}], {vr(vF2,2)}
        s_cmp_lt_u32 s62, {SPIN_MAX}
        s_cselect_b32 s63, vcc_lo, 0
        """)
        for k in range(2):
            a(f"""
            s_bitcmp1_b32 s{sPEND}, {k+2}
            s_cbranch_scc0 {L}{k}
            s_and_b32 s57, s63, {15 << 4*k}
            s_cbranch_scc1 {L}{k}
            """)
            stamp(a, 11)
            loads(k)
            a(f"s_xor_b32 s{sPEND}, s{sPEND}, {5 << k}\n{L}{k}:")
    a(f"s_mov_b32 s{sPEND}, 12\ns_mov_b32 s62, 0\ns_waitcnt vmcnt(1)")
    a(f"""
    v_add_u32 v12, s61, v{vOFF}
    v_and_b32 v11, 7, v0
    v_lshlrev_b32 v11, 2, v11
    v_add_u32 v11, {LDS_FLG}, v11
    s_lshl_b32 s61, s{sWAVE}, 3
    s_add_u32 s61, s61, {LDS_FLG}
    v_mov_b32 v10, s61
    v_lshlrev_b32 v4, 11, v2
    v_lshl_add_u32 v4, v3, 5, v4
    s_lshl_b32 s60, s60, 16
    s_and_b32 s61, s{sHEAD}, 3
    s_lshl_b32 s61, s61, 2
    s_add_u32 s61, s61, s{sWAVE}
    s_lshl_b32 s61, s61, 6
    s_add_u32 s60, s60, s61
    s_add_u32 s60, s60, 1024
    s_mov_b32 s{sDONE}, 0
    """)
    for i in range(16): a(f"v_mov_b32 v{ACC+i}, 0")
    a("s_barrier")
    stamp(a, 9)
    flags(f"{P}_f0")
    a(f"s_and_b32 s57, s{sPEND}, 12\ns_cbranch_scc0 {P}_round\n{f2load()}")
    a(f"""
    {P}_round:
    s_add_u32 s62, s62, 1
    s_waitcnt vmcnt(0)
    """)
    if OPT['trace']:
        a(f"s_cmp_eq_u32 s{sPEND}, 0\ns_cbranch_scc1 {P}_notr\ns_memrealtime s[74:75]\ns_waitcnt lgkmcnt(0)")
        for r in range(1, 7): a(f"s_cmp_eq_u32 s62, {r}\ns_cselect_b32 s{76+r}, s74, s{76+r}")
        a(f"""
        s_lshl_b32 s89, s89, 4
        s_or_b32 s89, s89, s{sPEND}
        s_bcnt1_i32_b32 s75, s{sDONE}
        s_lshl_b32 s90, s90, 4
        s_or_b32 s90, s90, s75
        s_mov_b32 s86, s74
        {P}_notr:
        """)
    for k in range(2):
        r = LD + 16*k
        a(f"s_bitcmp1_b32 s{sPEND}, {k}\ns_cbranch_scc0 {P}_chk{k}")
        a(f"v_max3_u32 v8, v{r}, v{r+1}, v{r+2}")
        for i in range(3, 15, 2): a(f"v_max3_u32 v8, v8, v{r+i}, v{r+i+1}")
        a(f"""
        v_max_u32 v8, v8, v{r+15}
        v_cmp_eq_u32 vcc, -1, v8
        s_cmp_lt_u32 s62, {SPIN_MAX}
        s_cselect_b64 vcc, vcc, 0
        s_cbranch_vccz {P}_pub{k}
        """)
        loads(k)
        a(f"s_branch {P}_chk{k}")
        if k == 0: pad(a, P, 4)
        a(f"{P}_pub{k}:")
        stamp(a, 10)
        for i in range(4): a(f"ds_write_b128 v12, {vr(r+4*i,4)} offset:{k*4096+i*1024}")
        a(f"""
        ds_write_b32 v10, v10 offset:{4*k}
        s_bitset0_b32 s{sPEND}, {k}
        {P}_chk{k}:
        """)
    a(f"s_and_b32 s57, s{sPEND}, 12\ns_cbranch_scc0 {P}_noflag")
    flags(f"{P}_f1")
    a(f"s_and_b32 s57, s{sPEND}, 12\ns_cbranch_scc0 {P}_noflag\n{f2load()}\n{P}_noflag:")
    a(f"""
    ds_read_b32 v8, v11
    s_waitcnt lgkmcnt(0)
    v_cmp_ne_u32 vcc, 0, v8
    s_nop 0
    s_andn2_b32 s{sM}, vcc_lo, s{sDONE}
    s_and_b32 s{sM}, s{sM}, 0xff
    s_cbranch_scc0 {P}_round
    s_or_b32 s{sDONE}, s{sDONE}, s{sM}
    s_ff1_i32_b32 s61, s{sM}
    s_lshl_b32 s61, s61, 12
    v_add_u32 v9, s61, v{vOFF}
    """)
    for i in range(4): a(f"ds_read_b128 {vr(BUF+4*i,4)}, v9 offset:{i*1024}")
    for g in range(8):
        a(f"""
        s_bitcmp1_b32 s{sM}, {g}
        s_cbranch_scc0 {P}_grp{g}
        s_bitset0_b32 s{sM}, {g}
        s_ff1_i32_b32 s61, s{sM}
        s_and_b32 s61, s61, 7
        s_lshl_b32 s61, s61, 12
        v_add_u32 v9, s61, v{vOFF}
        """)
        for i in range(4):
            a(f"s_waitcnt lgkmcnt(3)")
            a(f"v_mfma_f32_32x32x16_bf16 {vr(ACC,16)}, {vr(vWO+16*g+4*i,4)}, {vr(BUF+4*i,4)}, {vr(ACC,16)}")
            a(f"ds_read_b128 {vr(BUF+4*i,4)}, v9 offset:{i*1024}")
        a(f"{P}_grp{g}:")
        if g == 0: pad(a, P, 5)
        if g == 4: pad(a, P, 6, 1, f"{P}_ret1")
    a(f"""
    s_cmp_lg_u32 s{sDONE}, 0xff
    s_cbranch_scc1 {P}_round
    s_nop 8
    """)
    F0 = 40
    for i in range(8): a(f"v_cvt_pk_bf16_f32 v{F0+i}, v{ACC+2*i}, v{ACC+2*i+1}")
    a(f"buffer_store_dwordx4 {vr(F0,4)}, v4, s[{sOUT}:{sOUT+3}], s60 offen {OPT['ob']}")
    a(f"buffer_store_dwordx4 {vr(F0+4,4)}, v4, s[{sOUT}:{sOUT+3}], s60 offen offset:16 {OPT['ob']}")
    stamp(a, 12)
    a(f"{P}_done:")
    stamp_flush(a, 0)
    a(f"{P}_end:\ns_endpgm\n{P}_fallback:")
    attn.addr_setup(a)
    a(f"""
    v_mov_b32 v{vT0}, 0xff800000
    s_movk_i32 s66, 64
    {P}_maxloop:
    ds_read_b128 {vr(vK,4)}, v{vKA}
    v_add_u32 v{vKA}, 0x400, v{vKA}
    s_waitcnt lgkmcnt(0)
    v_mfma_f32_32x32x16_bf16 {vr(vS[0],16)}, {vr(vK,4)}, {vr(vQ,4)}, 0
    s_nop 12
    """)
    attn.max16(a, vT0, vS[0], False)
    a(f"""
    s_sub_u32 s66, s66, 1
    s_cmp_lg_u32 s66, 0
    s_cbranch_scc1 {P}_maxloop
    """)
    attn.set_c(a, 0.0)
    a(f"v_mov_b32 v{vKA}, v{vOFF}")
    attn.prime(a)
    a(f"""
    s_mov_b32 s65, 1
    s_movk_i32 s66, 8
    """)
    a.c("fallback pass (true row max)")
    a(f".p2align 6\n{P}_loop:")
    attn.iteration(a, 6)
    a(f"""
    s_sub_u32 s66, s66, 1
    s_cmp_lg_u32 s66, 0
    s_cbranch_scc1 {P}_loop
    s_branch {P}_attn_done
    """)
    return kernel_header(name) + a.text() + kernel_desc(name, VGPRS)

def header():
    ref = open(f"cdna_kernels/{NAME}.s.ref").read().split("\n")
    return "\n".join(l for l in ref if l.startswith(";") and "@launch" not in l and "Override" not in l and "grid=ceil" not in l) + "\n"
def gen(aslist=True):
    s = header()
    if aslist: s += f"; @launch kernel={NAME}_kernel grid=(256,1,1) block=(512,1,1) lds={LDS_BYTES}\n"
    else: s += f"; @launch grid=(256,1,1) block=(512,1,1) lds={LDS_BYTES}\n"
    s += '.amdgcn_target "amdgcn-amd-amdhsa--gfx950"\n'
    return s + gen_kernel(NAME + "_kernel")
if __name__ == "__main__":
    open(f"fused.s", "w").write(gen(False))
    open(f"fused_list.s", "w").write(gen(True))
```

```python
from asmlib import *
import struct, math
def f32bits(x): return struct.unpack("<I", struct.pack("<f", x))[0]

G_PS = 136 * 16
G_CS = 2 * G_PS
G_SS = 16 * G_CS
G_TS = 16 * G_SS
K1_LDS = 131072
LX, LW = 0, 65536
QSCALE = 0.25 * math.log2(math.e)
VSCALE = 1.0

sWAVE, sXCD, sI, sJ, sROT = 8, 9, 10, 11, 12
sFL, sCLS = 14, 15
sST, vST, vSA = 36, 144, 176
sX, sW, sWS = 16, 20, 24
K1_VGPR = 144
MIDPOS = 0
ROT = 8
RMASK = 3
PSF = 'sc1'
CPF = 1
IMMC = 0
PRI = 1
SEQD = '04152637'
RQ = 0
RD = 0
sDEL = 7
SPF = 1
FLATE = 1
NTF = ''
FINIT = 4
FDEL = 1
SEQF = '02461357'
AMAJ = 1
MIX = 1
M16X = 0
NTX = ''
NTW = ''
CHST = 0
SEQ = '01234567'
CF = 256
ORDER = 'gmi'
DEPTH = 2
NST = ''
RC = (1, 1, 0, 7)

def gemm_loop(a, P, mode, hooks={}):
    vXA, vWA, F0, ACC = 4, 8, 16, 64
    if mode == 'f':
        nx, setsz = 4, 20
    else:
        nx, setsz = 2, 16
    def reads(slot, ks, st):
        base = F0 + st * setsz
        r = []
        if mode == 'f':
            r.append(f"ds_read_b128 {vr(base+16,4)}, v{vWA+ks} offset:{slot*16384}")
            for t in range(4): r.append(f"ds_read_b128 {vr(base+4*t,4)}, v{vXA+ks} offset:{slot*16384+t*4096}")
        else:
            r.append(f"ds_read_b128 {vr(base,4)}, v{vXA+ks} offset:{slot*16384}")
            for z in range(2): r.append(f"ds_read_b64_tr_b16 {vr(base+8+2*z,2)}, v{vWA} offset:{slot*16384+ks*4096+z*1024}")
            for z in range(2): r.append(f"ds_read_b64_tr_b16 {vr(base+12+2*z,2)}, v{vWA+1} offset:{slot*16384+ks*4096+z*1024}")
            r.append(f"ds_read_b128 {vr(base+4,4)}, v{vXA+ks} offset:{slot*16384+4096}")
        return r
    def mfmas(st, first):
        base = F0 + st * setsz
        m = []
        if mode == 'f':
            for t in range(4):
                c = "0" if first else vr(ACC+16*t,16)
                m.append(f"v_mfma_f32_32x32x16_bf16 {vr(ACC+16*t,16)}, {vr(base+4*t,4)}, {vr(base+16,4)}, {c}")
        else:
            for (x, w) in ((0,0),(0,1),(1,0),(1,1)):
                t = 2*x + w
                c = "0" if first else vr(ACC+16*t,16)
                X, W = vr(base+4*x,4), vr(base+8+4*w,4)
                A, B = (W, X) if mode == 'qk' else (X, W)
                m.append(f"v_mfma_f32_32x32x16_bf16 {vr(ACC+16*t,16)}, {A}, {B}, {c}")
        return m
    def last_chunk():
        sets = [0, 2, 7, 1]
        R = [reads(3, ks, sets[ks]) for ks in range(4)]
        rd = sum([r[:5] for r in R], []) + [r[5] for r in R]
        M = [mfmas(sets[ks], False) for ks in range(4)]
        a("s_waitcnt lgkmcnt(0)\ns_barrier")
        seq = [(m, None) for m in mfmas(1, False)]
        for ks in range(4): seq += [(M[ks][0], 5 if ks < 3 else 4), (M[ks][1], None)]
        for (m, w), k in zip(seq, (3, 3, 2, 2, 3, 2, 3, 2, 2, 2, 0, 0)):
            if w is not None: a(f"s_waitcnt lgkmcnt({w})")
            a(m)
            for _ in range(k): a(rd.pop(0))
        ep = []
        for n in range(4): ep += epi_frag(n) + ["s_mov_b64 exec, s[44:45]\n" + p1store(n) + "\ns_mov_b64 exec, -1"]
        a("s_waitcnt lgkmcnt(0)")
        for i, k in enumerate((0, 5, 5, 5, 6, 5, 5, 5)):
            a(M[i >> 1][2 + (i & 1)])
            if i == 0: a("s_nop 6")
            for _ in range(k): a(ep.pop(0))
    stamp(a, 1)
    a("s_barrier")
    stamp(a, 2)
    for r in reads(0, 0, 0): a(r)
    steps = [(c, ks) for c in range(8) for ks in range(4)]
    for n, (c, ks) in enumerate(steps):
        st = n & 1
        if AMAJ and mode != 'f' and n == 27:
            last_chunk(); break
        a("s_waitcnt lgkmcnt(0)")
        nxt = steps[n+1] if n + 1 < len(steps) else None
        if nxt and nxt[1] == 0:
            a("s_barrier")
            if CHST: stamp(a, 16 + 4 + nxt[0])
        rd = reads(nxt[0] & 3, nxt[1], st ^ 1) if nxt else []
        m = mfmas(st, n == 0)
        split = [3, 3, 0, 0] if len(rd) == 6 else [2, 2, 1, 0]
        for i in range(4):
            if M16X:
                import re
                g = re.match(r"\S+ v\[(\d+):\d+\], (\S+), (\S+), (\S+)", m[i])
                for u in range(2):
                    d = int(g.group(1)) + 8 * (n & 1) + 4 * u
                    a(f"v_mfma_f32_16x16x32_bf16 {vr(d,4)}, {g.group(2+u)}, {g.group(3-u)}, {'0' if n < 2 else vr(d,4)}")
            else: a(m[i])
            for _ in range(split[i]):
                if rd: a(rd.pop(0))
            if i == 2 and n in hooks: hooks[n](mode)
    stamp(a, 3)

def epi_frag(n):
    acc = 64 + 8 * n
    return [f"v_pk_mul_f32 {vr(acc+i,2)}, {vr(acc+i,2)}, s[32:33]" for i in range(0, 8, 2)] + \
           [f"v_cvt_pk_bf16_f32 v{vST+4*n+i}, v{acc+2*i}, v{acc+2*i+1}" for i in range(4)]
def p1store(n):
    return f"buffer_store_dwordx4 {vr(vST+4*n,4)}, v{vSA}, s[{sWS}:{sWS+3}], s{sST+n} offen {PSF}"

def lane_consts(a):
    a("""
    v_and_b32 v1, 63, v0
    v_and_b32 v2, 31, v0
    v_bfe_u32 v3, v0, 5, 1
    """)

def xaddr(a, dst, rowreg, base, tmp):
    a(f"""
    v_bfe_u32 v{tmp}, v{rowreg}, 1, 3
    v_xor_b32 v{tmp}, v{tmp}, v3
    v_lshlrev_b32 v{tmp}, 4, v{tmp}
    v_lshl_add_u32 v{dst}, v{rowreg}, 7, v{tmp}
    """)
    if base: a(f"v_add_u32 v{dst}, {base}, v{dst}")
    for ks in range(1, 4): a(f"v_xor_b32 v{dst+ks}, {ks*32}, v{dst}")

def phase1(a, P, store_flags="", loader_pre=None, loader_mid=None, loader_post=None, comp_pre=None, hooks={}, loader_late=None, qkv_post=None, pad=None):
    a(f"""
    s_cmp_ge_u32 s2, 256
    s_cbranch_scc1 {P}_end
    s_and_b32 s5, s2, 1
    s_lshl_b32 s5, s5, 3
    s_add_u32 s5, s5, {KA_HRE}
    s_cmp_ge_u32 s2, 192
    s_cselect_b32 s4, {KA_AX}, {KA_BX}
    s_cselect_b32 s5, s5, {KA_WQKV}
    s_load_dwordx2 s[{sX}:{sX+1}], s[0:1], s4
    s_load_dwordx2 s[{sW}:{sW+1}], s[0:1], s5
    s_load_dwordx2 s[64:65], s[0:1], {KA_WO}
    s_load_dwordx2 s[{sWS}:{sWS+1}], s[0:1], {KA_WS}
    s_load_dwordx2 s[68:69], s[0:1], {KA_DBG}
    v_lshrrev_b32 v1, 6, v0
    s_and_b32 s{sXCD}, s2, 7
    v_readfirstlane_b32 s{sWAVE}, v1
    s_lshr_b32 s3, s2, 3
    """)
    if CPF:
        a.c("pull this kernel's code into L2 (each workgroup a slice)")
        a(f"""
        s_cmp_lg_u32 s{sWAVE}, 0
        s_cbranch_scc1 {P}_nocpf
        s_getpc_b64 s[58:59]
        {P}_pc:
        s_lshl_b32 s60, s3, 4
        v_and_b32 v12, 15, v0
        v_add_u32 v12, s60, v12
        v_lshlrev_b32 v12, 7, v12
        v_min_u32 v12, {P}_end-{P}_pc, v12
        v_mov_b32 v13, s59
        v_add_co_u32 v12, vcc, s58, v12
        s_nop 1
        v_addc_co_u32 v13, vcc, 0, v13, vcc
        global_load_dword v200, v[12:13], off
        {P}_nocpf:
        """)
    a(f"""
    s_and_b32 s4, s3, 3
    s_lshl_b32 s{sI}, s{sXCD}, 1
    s_and_b32 s{sI}, s{sI}, 12
    s_add_u32 s{sI}, s{sI}, s4
    s_lshr_b32 s4, s3, 2
    s_add_u32 s{sROT}, s3, s4
    s_and_b32 s4, s4, 1
    s_lshl_b32 s{sJ}, s{sXCD}, 1
    s_and_b32 s{sJ}, s{sJ}, 2
    s_cmp_ge_u32 s2, {CF}
    s_cselect_b32 s5, s{sJ}, 0
    s_add_u32 s{sROT}, s{sROT}, s5
    s_and_b32 s{sROT}, s{sROT}, {RMASK}
    s_add_u32 s{sJ}, s{sJ}, s4
    s_lshr_b32 s{sXCD}, s3, 3
    """)
    a(f"""
    s_mov_b32 s{sWS+2}, {WS_BYTES}
    s_mov_b32 s{sWS+3}, 0x20000
    s_mov_b32 s{sX+2}, 0x200000
    s_mov_b32 s{sX+3}, 0x20000
    s_mov_b32 s{sW+3}, 0x20000
    """)
    lane_consts(a)
    a(f"""
    s_cmp_lt_u32 s{sWAVE}, 4
    s_cbranch_scc1 {P}_comp
    """)
    sLW, sXO, sWO, sXQ, sWQ, sWC, sM, sCH = 13, 28, 29, 30, 31, 32, 33, 34
    a(f"""
    s_sub_u32 s{sLW}, s{sWAVE}, 4
    v_lshrrev_b32 v4, 3, v1
    v_and_b32 v5, 7, v1
    v_lshrrev_b32 v6, 4, v1
    v_xor_b32 v5, v5, v6
    v_lshlrev_b32 v5, 4, v5
    s_mov_b64 s[36:37], -1
    s_cmp_eq_u32 s{sXCD}, 3
    s_cbranch_scc1 {P}_ldf
    s_mov_b32 s{sW+2}, {512*3072}
    v_lshl_add_u32 v8, v4, 10, v5
    v_xor_b32 v9, 64, v8
    v_and_b32 v7, 15, v1
    v_lshlrev_b32 v10, 2, v6
    v_xor_b32 v7, v7, v10
    v_lshlrev_b32 v7, 4, v7
    v_mul_u32_u24 v10, 3072, v6
    v_add_u32 v10, v10, v7
    s_cmp_lt_u32 s{sXCD}, {2 * MIX}
    s_cselect_b32 s3, 896, 0
    s_cselect_b32 s4, 7, 8
    v_lshrrev_b32 v7, 7, v7
    v_mad_u32_u24 v10, v7, s3, v10
    v_mov_b32 v11, v10
    s_lshl_b32 s{sXO}, s{sI}, 17
    s_lshl_b32 s3, s{sLW}, 15
    s_add_u32 s{sXO}, s{sXO}, s3
    s_movk_i32 s{sXQ}, 0x2000
    s_lshl_b32 s{sWO}, s{sXCD}, 2
    s_add_u32 s{sWO}, s{sWO}, s{sJ}
    s_lshl_b32 s{sWO}, s{sWO}, s4
    s_mul_i32 s3, s{sLW}, {16*3072}
    s_add_u32 s{sWO}, s{sWO}, s3
    s_movk_i32 s{sWQ}, {4*3072}
    s_mov_b32 s{sWC}, {64*3072}
    s_and_b32 s3, s{sI}, {3 if PRI else 0}
    s_min_u32 s{sDEL}, s3, s{sXCD}
    s_and_b32 s3, s{sI}, {RQ}
    s_xor_b32 s{sROT}, s{sROT}, s3
    s_mov_b32 s35, 0x{SEQ[::-1]}
    s_cmp_lg_u32 s{sDEL}, 0
    s_cselect_b32 s35, 0x{SEQD[::-1]}, s35
    s_cselect_b32 s3, {RD}, 0
    s_xor_b32 s{sROT}, s{sROT}, s3
    s_branch {P}_ldgo
    {P}_ldf:
    s_mov_b32 s{sW+2}, {512*1024}
    v_lshl_add_u32 v8, v4, 16, v5
    v_xor_b32 v9, 64, v8
    v_lshl_add_u32 v10, v4, 11, v5
    v_xor_b32 v11, 64, v10
    s_lshl_b32 s{sXO}, s{sI}, 2
    s_add_u32 s{sXO}, s{sXO}, s{sLW}
    s_lshl_b32 s{sXO}, s{sXO}, 10
    s_mov_b32 s{sXQ}, 0x80000
    s_and_b32 s{sWO}, s{sJ}, 1
    s_lshl_b32 s{sWO}, s{sWO}, 10
    s_lshl_b32 s3, s{sLW}, 16
    s_add_u32 s{sWO}, s{sWO}, s3
    s_movk_i32 s{sWQ}, 0x4000
    s_movk_i32 s{sWC}, 128
    s_mov_b32 s{sDEL}, 1
    s_mov_b32 s35, 0x{SEQF[::-1]}
    s_lshl_b32 s3, s{sLW}, 4
    s_add_u32 s3, s3, s{sJ}
    s_cmp_eq_u32 s3, 2
    s_cbranch_scc0 {P}_ldgo
    s_mov_b32 s36, 0xffffff00
    v_mov_b32 v12, 0xbf803f80
    v_lshlrev_b32 v13, 2, v2
    v_lshl_add_u32 v13, v3, 14, v13
    v_add_u32 v13, {LW}, v13
    ds_write_b32 v13, v12
    ds_write_b32 v13, v12 offset:32768
    {P}_ldgo:
    s_lshl_b32 s{sM}, s{sLW}, 12
    s_mov_b32 s{sCH}, s{sROT}
    s_waitcnt lgkmcnt(0)
    """)
    def issue(n, ntx=None):
        if ntx is None: ntx = NTX
        slot = n & 3
        a(f"""
        s_lshl_b32 s38, s{sCH}, 7
        s_add_u32 s38, s38, s{sXO}
        s_mul_i32 s39, s{sCH}, s{sWC}
        s_add_u32 s39, s39, s{sWO}
        s_bfe_u32 s{sCH}, s35, {(4 << 16) | 4 * ((n + 1) & 7)}
        s_xor_b32 s{sCH}, s{sCH}, s{sROT}
        """)
        for q in range(4):
            a(f"s_add_u32 m0, s{sM}, {LX + slot*16384 + q*1024}")
            a("s_nop 0" if q == 0 else f"s_add_u32 s39, s39, s{sWQ}")
            a(f"buffer_load_dwordx4 v{8 + (q&1)}, s[{sX}:{sX+3}], s38 offen {ntx} lds")
            a(f"s_add_u32 m0, s{sM}, {LW + slot*16384 + q*1024}")
            a(f"s_add_u32 s38, s38, s{sXQ}")
            if q == 0: a("s_mov_b64 exec, s[36:37]")
            a(f"buffer_load_dwordx4 v{10 + (q&1)}, s[{sW}:{sW+3}], s39 offen {NTW} lds")
            if q == 0: a("s_mov_b64 exec, -1")
    stamp(a, 13)
    if FLATE: a(f"s_cmp_eq_u32 s{sXCD}, 3\ns_cbranch_scc1 {P}_ld0")
    issue(0)
    a(f"{P}_ld0:")
    stamp(a, 14)
    def spf():
        a.c("scalar touches pull the second k half of x and Wqkv out of HBM ahead of the tiles' loads")
        a(f"""
        s_lshl_b32 s3, s2, 2
        s_add_u32 s3, s3, s{sLW}
        s_mul_i32 s4, s3, 768
        s_lshl_b32 s3, s3, 11
        """)
        for i in range(8):
            a(f"s_load_dword s100, s[96:97], s3 offset:{(i >> 2) * 1024 + 512 + (i & 3) * 128}")
            if i < 6: a(f"s_load_dword s100, s[98:99], s4 offset:{256 * 3072 + i * 128}")
    if SPF == 1: spf()
    loader_pre(sLW)
    if SPF == 2: spf()
    loader_mid(sLW)
    if SPF == 3: spf()
    def loop(n, depth, main):
        for c in range(6):
            a(f"s_waitcnt vmcnt({8 * (n - 1 - c)})")
            a("s_barrier")
            while n < 8 and n <= c + depth:
                issue(n, None if main else NTF); n += 1
    a(f"s_cmp_eq_u32 s{sXCD}, 3\ns_cbranch_scc1 {P}_ldf2")
    a(f"s_cmp_lg_u32 s{sDEL}, 0\ns_cbranch_scc1 {P}_ldf3")
    issue(1)
    if SPF == 4: spf()
    loop(2, DEPTH, True)
    a(f"{P}_ldpost:")
    if loader_post:
        loader_post(sLW)
    a(f"{P}_ldf2:")
    if SPF >= 4: spf()
    if FLATE: issue(0, NTF)
    a(f"{P}_ldf3:")
    for k in range(1, FINIT): issue(k, NTF)
    loop(FINIT, 3, False)
    a(f"s_branch {P}_ldpost")
    a(f"""
    {P}_comp:
    """)
    if comp_pre: comp_pre()
    a(f"""
    s_cmp_eq_u32 s{sXCD}, 3
    s_cbranch_scc1 {P}_cf
    s_and_b32 s28, s{sWAVE}, 1              ; wm
    s_lshr_b32 s29, s{sWAVE}, 1             ; wn
    """)
    a.c("W (tr) addresses")
    a(f"""
    v_bfe_u32 v12, v1, 2, 2                 ; r
    s_lshl_b32 s3, s29, 1
    v_xor_b32 v13, s3, v12
    v_lshlrev_b32 v13, 6, v13
    v_lshl_add_u32 v13, v12, 8, v13         ; r*256 + blk*64
    v_lshl_add_u32 v13, v3, 11, v13         ; + 8h rows
    v_bfe_u32 v14, v1, 4, 1
    v_lshl_add_u32 v13, v14, 5, v13
    v_and_b32 v14, 3, v1
    v_lshl_add_u32 v13, v14, 3, v13
    v_add_u32 v8, {LW}, v13
    v_xor_b32 v9, 64, v8
    s_lshl_b32 s3, s28, 6
    s_lshl_b32 s35, s{sJ}, 1
    s_add_u32 s35, s35, s29
    s_lshl_b32 s31, s{sXCD}, 2
    s_add_u32 s31, s31, s{sJ}
    s_cmp_lt_u32 s{sXCD}, {2 * MIX}
    s_cselect_b32 s35, s31, s35
    s_cselect_b32 s{sXCD}, s29, s{sXCD}
    s_lshl_b32 s30, s35, 15
    s_lshl_b32 s31, s{sXCD}, 21
    s_add_u32 s30, s30, s31
    s_and_b32 s31, s{sI}, 3
    s_lshl_b32 s31, s31, {PRI}
    s_lshl_b32 s32, s28, {0 if PRI else 2}
    s_add_u32 s31, s31, s32
    s_lshr_b32 s32, s{sI}, 2
    s_lshr_b32 s{sCLS}, s31, 1
    s_min_u32 s{sCLS}, s{sCLS}, 2
    s_lshr_b32 s33, s{sI}, 1                ; Q: q block
    s_lshl_b32 s34, s{sI}, 1
    s_and_b32 s34, s34, 2
    s_add_u32 s34, s34, s28
    s_cmp_eq_u32 s{sXCD}, 0
    s_cselect_b32 s31, s33, s31
    s_cselect_b32 s32, s34, s32
    s_cselect_b32 s{sCLS}, 0, s{sCLS}
    s_lshl_b32 s31, s31, 18
    s_lshl_b32 s32, s32, 11
    s_add_u32 s30, s30, s31
    s_add_u32 s{sST}, s30, s32
    s_cmp_eq_u32 s{sXCD}, 2
    s_cselect_b32 s31, 512, 0
    s_cselect_b32 s32, 0, 0x2000
    s_add_u32 s31, s31, s32                 ; z stride
    s_xor_b32 s{sST+2}, s{sST}, 0x5000
    s_add_u32 s{sST+1}, s{sST}, s31
    s_add_u32 s{sST+3}, s{sST+2}, s31
    s_add_u32 s{sST+4}, s{sST}, 1024
    s_add_u32 s{sST+5}, s{sST+1}, 1024
    s_add_u32 s{sST+6}, s{sST+2}, 1024
    s_add_u32 s{sST+7}, s{sST+3}, 1024
    s_lshl_b32 s32, s{sXCD}, 4
    s_add_u32 s32, s32, s{sI}
    s_lshl_b32 s32, s32, 1
    s_add_u32 s32, s32, s28
    s_lshl_b32 s32, s32, 3
    s_add_u32 s32, s32, s35
    s_lshl_b32 s32, s32, 7
    s_add_u32 s{sFL}, s32, {WS_FL}
    s_cmp_le_u32 s{sCLS}, {IMMC}
    s_cselect_b64 s[44:45], -1, 0
    """)
    if FDEL and PRI: hooks[-1]('d')
    a(f"""
    s_cmp_eq_u32 s{sXCD}, 2
    s_cbranch_scc1 {P}_cv
    v_add_u32 v12, s3, v2
    """)
    xaddr(a, 4, 12, LX, 13)
    a(f"""
    v_lshlrev_b32 v{vSA}, 4, v1
    s_cmp_eq_u32 s{sXCD}, 0
    s_cselect_b32 s32, {hex(f32bits(QSCALE))}, 1.0
    s_mov_b32 s33, s32
    """)
    def epi(now):
        for n in range(4 if AMAJ else 0, 8):
            for x in epi_frag(n): a(x)
            if now: a(p1store(n))
    def epilogue():
        a(f"""
        s_cmp_le_u32 s{sCLS}, {IMMC}
        s_nop {0 if AMAJ else 6}
        s_cbranch_scc0 {P}_epi_late
        """)
        epi(True)
        if IMMC: a(f"s_cmp_lg_u32 s{sCLS}, 0\ns_cbranch_scc1 {P}_p1done")
        qkv_post()
    gemm_loop(a, P, 'qk', hooks)
    epilogue()
    a(f"""
    {P}_cv:
    v_and_b32 v12, 0x13, v2
    v_bfe_u32 v13, v2, 2, 1
    v_lshl_add_u32 v12, v13, 3, v12
    v_bfe_u32 v13, v2, 3, 1
    v_lshl_add_u32 v12, v13, 2, v12
    v_add_u32 v12, s3, v12
    """)
    xaddr(a, 4, 12, LX, 13)
    a(f"""
    v_and_b32 v10, 15, v1
    v_lshlrev_b32 v10, 4, v10
    v_lshl_add_u32 v10, v3, 8, v10
    v_bfe_u32 v13, v1, 4, 1
    v_lshl_add_u32 v{vSA}, v13, 13, v10
    s_mov_b32 s32, {hex(f32bits(VSCALE))}
    s_mov_b32 s33, s32
    """)
    gemm_loop(a, P, 'v', hooks)
    epilogue()
    a(f"{P}_epi_late:")
    epi(False)
    a(f"{'' if PRI else 's_barrier'}\ns_branch {P}_p1done")
    a(f"{P}_cf:")
    xaddr(a, 4, 2, LX, 13)
    a(f"s_lshl_b32 s3, s{sWAVE}, 5\nv_add_u32 v12, s3, v2")
    xaddr(a, 8, 12, LW, 13)
    a.c("real DFT-32 matrix fragments in v[128:135]")
    a(f"""
    v_bfe_u32 v13, v2, 2, 1                 ; h'
    v_lshlrev_b32 v13, 3, v13
    v_lshrrev_b32 v14, 3, v2                ; j
    v_lshl_add_u32 v13, v14, 1, v13
    v_bfe_u32 v14, v2, 1, 1
    v_add_u32 v13, v13, v14                 ; slot
    v_and_b32 v14, 1, v2                    ; comp
    v_cmp_eq_u32 vcc, 1, v2
    v_cvt_f32_u32 v14, v14
    v_mul_f32 v14, 0xbe800000, v14          ; phase -0.25
    v_cndmask_b32 v13, v13, 16, vcc
    v_cndmask_b32 v14, v14, 0, vcc
    v_cvt_f32_u32 v13, v13
    v_mul_f32 v13, {hex(f32bits(1/32))}, v13
    v_cvt_f32_u32 v15, v3
    v_mul_f32 v15, 4.0, v15
    v_fma_f32 v14, v15, v13, v14
    """)
    for kk in range(2):
        for s in range(0, 8, 2):
            for u in range(2):
                s1 = 16*kk + 8*((s+u)//4) + (s+u) % 4
                a(f"s_mov_b32 s3, {hex(f32bits(float(s1)))}")
                a(f"v_fma_f32 v{136+u}, s3, v13, v14")
                a(f"v_cos_f32 v{136+u}, v{136+u}")
            a("s_nop 0")
            a(f"v_cvt_pk_bf16_f32 v{128+4*kk+s//2}, v136, v137")
    a(f"""
    v_lshlrev_b32 v14, 4, v12               ; idx*16
    s_mov_b32 s3, {8*G_SS}
    v_mad_u32_u24 v14, v3, s3, v14
    s_lshr_b32 s28, s{sJ}, 1
    s_mul_i32 s28, s28, {G_TS}
    v_add_u32 v14, s28, v14
    s_cmp_eq_u32 s{sJ}, 2
    s_cselect_b32 s28, 0, -1
    v_cmp_eq_u32 vcc, s28, v12
    v_subrev_u32 v15, {G_TS - 128*16}, v14
    s_and_b32 s30, s{sJ}, 1
    v_cndmask_b32 v{vSA}, v14, v15, vcc
    s_mul_i32 s30, s30, {G_PS}
    s_mul_i32 s31, s{sI}, {G_CS}
    s_add_u32 s30, s30, s31
    s_mov_b32 s{sCLS}, 3
    """)
    for i in range(8): a(f"s_add_u32 s{sST+i}, s30, {WS_G + i*G_SS}")
    if FDEL: hooks[-1]('f')
    gemm_loop(a, P, 'f', hooks)
    a("s_nop 9")
    for T in range(4):
        for i in range(8): a(f"v_cvt_pk_bf16_f32 v{16+8*T+i}, v{64+16*T+2*i}, v{64+16*T+2*i+1}")
    a("s_nop 1")
    for T in range(4): a(f"v_mfma_f32_32x32x16_bf16 {vr(64+16*T,16)}, v[128:131], {vr(16+8*T,4)}, 0")
    for T in range(4): a(f"v_mfma_f32_32x32x16_bf16 {vr(64+16*T,16)}, v[132:135], {vr(20+8*T,4)}, {vr(64+16*T,16)}")
    a("s_nop 11")
    for i in range(8):
        for T in range(4): a(f"v_cvt_pk_bf16_f32 v{vST+4*i+T}, v{64+16*T+2*i}, v{64+16*T+2*i+1}")
    a(f"{P}_p1done:")
```

```python
import sys
from asmlib import *
import asmlib, k1, attn
from k1 import f32bits, G_PS, G_CS, G_SS, G_TS, sWAVE, sWS, sXCD, sI, sJ, sFL, sCLS, p1store
from attn import vKA, vVA, vIDX, vVST, vT0, vT1, vOFF, vQ, vK, vV0, vV1, vS, vC, vO, LDS_K, LDS_V, LDS_ONES
NAME = "concat_heads__spectral_fnet__softmax_full_mha__prompt"
LDS_XB = LDS_ONES + 10240
LDS_FLG = LDS_XB + 16384
LDS_BYTES = LDS_FLG + 64
VGPRS = 224
vTW, vG, vWO = 88, 120, 88
sN = 48
sHEAD, sQB, sR, sJJ, sSLOT = 50, 51, 52, 53, 54
sKVO, sRUN, sM0 = 55, 56, 57
sOUT = 20
SHIFT = 100.0
VS_LOG2 = 32
ONES = (127 + VS_LOG2) << 7
SPIN_MAX = 0x40000
OPT = dict(codepf=2, prio=1, midpos=0, rm=3, order='gmi', depth=2, cf=192, two=2, mix=1, spf=0, half=1, amaj=1, ntx='', seq='01234567', h=(20, 26), np=7, seqf='04261537', flate=1, ntf='', finit=4, b1=99, xp=1, wide=1, bx=14, oa='sc1', ob='', pfl='sc1', sfl='sc1', early=0, warm=1, tsn=(17, 19), tf=(50, 63), xo=7, xf=7, tfl=59, fm=1, sl=2, pri=1, seqd='04152637', rq=4, immc=1, cp=2, rd=0, imm=1, pm=(23, 27), shift=102.0, pq=(5, 10), bw=0, trace=0, pd=1, gap=0, bb=1, pe=((48, 56, 61), (49, 57, 63)), dry=0, ts=(0, 3), ta=(0, 8), tc=(6, 9))
vTA, vTD = 203, 204

def wg_roles(a):
    a(f"""
    s_and_b32 s58, s2, 7
    s_lshr_b32 s59, s2, 3
    s_lshl_b32 s{sHEAD}, s58, 2
    s_and_b32 s60, s59, 3
    s_add_u32 s{sHEAD}, s{sHEAD}, s60       ; head
    s_lshr_b32 s{sQB}, s59, 2               ; q block
    """)
    if OPT['fm']:
        a(f"""
        s_and_b32 s{sJJ}, s58, 3
        s_cmp_ge_u32 s59, 16
        s_cselect_b32 s61, 7, 0
        s_xor_b32 s{sJJ}, s{sJJ}, s61
        s_and_b32 s{sSLOT}, s59, 7
        s_lshl_b32 s{sSLOT}, s{sSLOT}, 1
        s_lshr_b32 s61, s58, 2
        s_add_u32 s{sSLOT}, s{sSLOT}, s61       ; slot
        s_lshr_b32 s60, s59, 2
        s_and_b32 s60, s60, 2
        """)
    else:
        a(f"""
        s_mov_b32 s{sJJ}, s{sQB}
        s_lshl_b32 s{sSLOT}, s58, 1
        s_and_b32 s61, s60, 1
        s_add_u32 s{sSLOT}, s{sSLOT}, s61       ; slot
        """)
    a(f"""
    s_sub_u32 s61, 32, s{sSLOT}
    s_cmp_eq_u32 s{sSLOT}, 0
    s_cselect_b32 s61, 16, s61
    s_cmp_lt_u32 s60, 2
    s_cselect_b32 s{sR}, s{sSLOT}, s61      ; residue r'
    s_mov_b32 s{sFL}, 0
    """)

def tag_load(a):
    a(f"v_mov_b32 v{vTA}, 0\nglobal_load_dwordx2 {vr(vTD,2)}, v{vTA}, s[68:69] sc1")

def tag_use(a, L):
    a(f"""
    s_mov_b32 s62, 0
    {L}_spin:
    s_waitcnt vmcnt(0)
    v_readfirstlane_b32 s{sN}, v{vTD}
    v_readfirstlane_b32 s{sN+1}, v{vTD+1}
    s_cmp_lg_u32 s{sN}, 0
    s_cbranch_scc1 {L}_ok
    """)
    tag_load(a)
    a(f"""
    s_add_u32 s62, s62, 1
    s_cmp_lt_u32 s62, {SPIN_MAX}
    s_cbranch_scc1 {L}_spin
    {L}_ok:
    """)

def poll(a, P, tag, vaddr, vd, soff, mask=None, fl='sc1'):
    a(f"""
    s_mov_b32 s62, 0
    {P}_{tag}_spin:
    buffer_load_dwordx2 {vr(vd,2)}, v{vaddr}, s[{sWS}:{sWS+3}], {soff} offen {OPT['pfl']}
    s_waitcnt vmcnt(0)
    v_cmp_ne_u64 vcc, s[{sN}:{sN+1}], {vr(vd,2)}
    s_add_u32 s62, s62, 1
    {f"s_and_b64 vcc, vcc, {mask}" if mask else ""}
    s_cbranch_vccz {P}_{tag}_ok
    s_cmp_lt_u32 s62, {SPIN_MAX}
    s_cbranch_scc1 {P}_{tag}_spin
    {P}_{tag}_ok:
    """)

def utile(a, t, ins, late=()):
    cur, nxt = vS[t & 1], vS[(t + 1) & 1]
    tt = t & 7
    e = lambda i: a(f"v_exp_f32 v{cur+i}, v{cur+i}")
    pq, p0 = (8, 12) if t in late else OPT['pq']
    def extra(k):
        for x in ins.get(k, []): a(x)
    e(0); e(1)
    a("s_waitcnt lgkmcnt(0)")
    if t > 0: a(f"v_smfmac_f32_32x32x32_bf16 {vr(vO,16)}, {vr(vV1,4)}, {vr(nxt+8,8)}, v{vIDX}")
    if t in late: a(f"ds_read_b128 {vr(vK,4)}, v{vKA} offset:{(t+1)*1024}")
    a(f"ds_read_b128 {vr(vV1,4)}, v{vVA} offset:{tt*1024+512}")
    extra(0)
    for i in range(2, pq): e(i)
    if t in late: a("s_waitcnt lgkmcnt(1)")
    if t < 63: a(f"v_mfma_f32_32x32x16_bf16 {vr(nxt,16)}, {vr(vK,4)}, {vr(vQ,4)}, {vr(vC,16)}")
    if t < 62 and t + 1 not in late: a(f"ds_read_b128 {vr(vK,4)}, v{vKA} offset:{(t+2)*1024}")
    extra(1)
    for i in range(pq, p0): e(i)
    a(f"v_smfmac_f32_32x32x32_bf16 {vr(vO,16)}, {vr(vV0,4)}, {vr(cur,8)}, v{vIDX}")
    if t < 63: a(f"ds_read_b128 {vr(vV0,4)}, v{vVA} offset:{(tt+1)*1024}")
    extra(2)
    for i in range(p0, 16): e(i)
    if tt == 7 and t < 63: a(f"v_add_u32 v{vVA}, v{vVST}, v{vVA}")

def kv_dma(c):
    ld = lambda o: f"buffer_load_dwordx4 v{vOFF}, s[{sWS}:{sWS+3}], s67 offen offset:{o} sc1 lds"
    k = [f"s_add_u32 m0, s{sM0}, {LDS_K + c*8192}", f"s_add_u32 s67, s{sKVO}, {WS_KF + c*0x40000}", ld(0)]
    v = [f"s_add_u32 m0, s{sM0}, {LDS_V + c*8192}", f"s_add_u32 s67, s{sKVO}, {WS_VF + c*0x40000}", ld(0)]
    return k, [ld(1024)], v, [ld(1024)]

vF2, vF2A, vSN = 216, 218, 220
vGE, vGB, vGO, vFA, vFD, vFG = 184, 185, 186, 187, 188, 190
def pad(a, P, k, bit=1, last=None):
    if OPT['dry'] & bit: a(f"{P}_pad{k}:\ns_cbranch_execz {last or f'{P}_pad{k+1}'}")
def walk(a, P, k, ret, bit=1):
    if OPT['dry'] & bit: a(f"s_mov_b64 exec, 0\ns_branch {P}_pad{k}\n{ret}:\ns_mov_b64 exec, -1")
def wo_store(): return ["s_mov_b64 exec, s[70:71]", f"buffer_store_dwordx4 v[192:195], v{vOFF}, s[{sWS}:{sWS+3}], s47 offen sc1", "s_mov_b64 exec, -1"]
def f2load(): return f"buffer_load_dwordx2 {vr(vF2,2)}, v{vF2A}, s[{sWS}:{sWS+3}], 0 offen sc1"
def late_stores(a, P, cls):
    if cls <= OPT['immc']: return
    a(f"s_cmp_lg_u32 s{sCLS}, {cls}\ns_cbranch_scc1 {P}_nost{cls}")
    for n in range(8): a(p1store(n))
    a(f"{P}_nost{cls}:")
def wave_flag(a):
    a(f"""
    s_mov_b64 exec, {0xffff if OPT['wide'] else 1}
    s_waitcnt vmcnt(0)
    buffer_store_dwordx2 {vr(vFD,2)}, v{vFG}, s[{sWS}:{sWS+3}], s{sFL} offen {OPT['sfl']}
    s_mov_b64 exec, -1
    """)

def attn_role(a, P, role):
    BX = OPT['bx']
    B1, TS, TA, (TP, TC) = OPT['b1'], OPT['ts'], OPT['ta'], OPT['tc']
    DM = {2: (TC, TC), 3: (TC+1, TC+1), 4: (18, 19), 5: (20, 21), 6: (22, 23), 7: (24, 25)}
    fl = lambda va: f"buffer_load_dwordx2 {vr(vFD,2)}, v{va}, s[{sWS}:{sWS+3}], 0 offen {OPT['pfl']}"
    def check(tag, va, mask=None):
        a(f"s_waitcnt vmcnt(0)\nv_cmp_ne_u64 vcc, s[{sN}:{sN+1}], {vr(vFD,2)}\ns_nop 0")
        if mask: a(f"s_and_b64 vcc, vcc, {mask}")
        a(f"s_cbranch_vccz {P}_{tag}_ok")
        poll(a, P, tag, va, vFD, "0", mask)
    for t in range(64):
        ins = {}
        add = lambda k, l: ins.setdefault(k, []).extend(l)
        if role == 'B':
            if t == TP or t == BX: add(0, [fl(vFG)])
            if t == TC:
                check("c2", vFG, 0xff << 16)
                stamp(a, 1)
            if t == 18: check("c4", vFG)
            for c, (tk, tv) in DM.items():
                d = kv_dma(c)
                if t == tk and t == tv: add(0, d[0] + d[1]); add(2, d[2] + d[3])
                elif t == tk: add(0, d[0]); add(2, d[1])
                elif t == tv: add(0, d[2]); add(2, d[3])
            if t == 26: add(0, [fl(vFA)])
            if t == 30: check("all", vFA)
            if t == B1: a("s_waitcnt vmcnt(0)")
        else:
            for cls in (2, 3):
                if t == TS[cls-2]: late_stores(a, P, cls)
            for cls in (1, 2):
                if t == TA[cls-1]:
                    a(f"s_cmp_lg_u32 s{sCLS}, {cls}\ns_cbranch_scc1 {P}_nofl{cls}")
                    wave_flag(a)
                    stamp(a, 6)
                    a(f"{P}_nofl{cls}:")
        if t == BX or (t == 30 and role == 'A'): a("s_waitcnt vmcnt(0)")
        if t in (B1, BX, 30): a("s_barrier")
        if t == BX: stamp(a, 2 if role == 'B' else 13)
        if t == 30: stamp(a, 3 if role == 'B' else 14)
        if role == 'A' and t == BX:
            add(0, [f"s_mov_b64 exec, s[70:71]",
                    f"buffer_store_dwordx2 {vr(vFD,2)}, v{vFA}, s[{sWS}:{sWS+3}], 0 offen sc1",
                    "s_mov_b64 exec, -1"])
        if role == 'A' and 30 <= t < 58:
            SL = OPT['sl']
            for k, i in ((SL, t - 30),) + ((((SL + 2) % 3, t - 2),) if t < 34 else ()):
                r = 59 if i >= 28 else 58
                if OPT['imm']:
                    if i % 4 == 0: add(k, [f"s_add_u32 s{r}, s63, {i * 0x400}"])
                    add(k, [f"buffer_load_dwordx4 {vr(vWO+4*i,4)}, v{vOFF}, s[{sWS}:{sWS+3}], s{r} offen offset:{(i % 4) * 1024} sc1"])
                else:
                    add(k, [f"s_add_u32 s58, s63, {i * 0x400}",
                            f"buffer_load_dwordx4 {vr(vWO+4*i,4)}, v{vOFF}, s[{sWS}:{sWS+3}], s58 offen sc1"])
        if t == OPT['tsn'][role == 'B']:
            add(2, [f"buffer_store_dwordx4 {vr(vSN,4)}, v{vOFF}, s[{sWS}:{sWS+3}], s72 offen sc1"])
        if role == 'A' and t in OPT['tf']:
            add(2, [f2load()])
        if role == 'B' and t == OPT['two']: add(2, wo_store())
        if role == 'B' and t == 31:
            add(2, [f"v_mov_b32 v{vSN}, s{sN}", f"v_mov_b32 v{vSN+1}, s{sN+1}"])
        if role == 'B' and t == OPT['tfl']:
            add(2, ["; early hint for the O fragments of waves w-4 and w: readers check the data for the fill words",
                    "s_mov_b32 exec_hi, 0",
                    f"buffer_store_dwordx2 {vr(vSN,2)}, v{vF2A}, s[{sWS}:{sWS+3}], s73 offen sc1",
                    "s_mov_b32 exec_hi, -1"])
        if role == 'B' and 32 <= t < 48:
            i = t - 32
            kq, ty, par = i >> 2, (i >> 1) & 1, i & 1
            va = vGO if par else (vGB if ty else vGE)
            if par == 0 or not OPT['imm']: add(OPT['sl'], [f"s_add_u32 s58, s63, {ty*G_TS + 2*kq*G_CS}"])
            add(OPT['sl'], [f"buffer_load_dwordx4 {vr(vG+4*i,4)}, v{va}, s[{sWS}:{sWS+3}], s58 offen sc1"])
        if OPT['prio']:
            pr = {0: 3, 3: 2, 5: 1, 6: 3, 10: 2, 12: 1} if B1 == 6 else {0: 3, BX-6: 2, BX-2: 1}
            pr.update({BX: 3, OPT['pm'][0]: 2, OPT['pm'][1]: 1, 30: 3})
            pr.update(zip(OPT['pe'][role == 'B'], (2, 1, 0)))
            if t in pr: add(1, [f"s_setprio {pr[t]}"])
        utile(a, t, ins, (15,) if BX == 15 else ())
    if role == 'A': a(f"s_branch {P}_attn_done")

def gen_kernel(name):
    a = Asm(); P = "F"
    stamp_init(a)
    vWG = 32
    def gather(sLW):
        a.c("gather one Wo fragment (loader waves 0,1)")
        a(f"""
        s_mov_b32 s66, 0x80000
        s_mov_b32 s67, 0x20000
        s_lshl_b32 s63, s2, 1
        s_add_u32 s63, s63, s{sLW}
        s_cmp_ge_u32 s{sLW}, 2
        s_cbranch_scc1 {P}_nowo
        s_and_b32 s58, s63, 31
        s_lshl_b32 s58, s58, 14
        s_lshr_b32 s59, s63, 5
        s_lshl_b32 s59, s59, 6
        s_add_u32 s58, s58, s59
        v_and_b32 v12, 3, v2
        v_lshrrev_b32 v13, 3, v2
        v_lshl_add_u32 v12, v13, 2, v12
        v_bfe_u32 v13, v2, 2, 1
        v_lshl_add_u32 v12, v13, 4, v12
        v_lshlrev_b32 v12, 1, v12
        v_lshl_add_u32 v12, v3, 12, v12
        s_add_u32 s59, s58, 0x2000
        """)
        for s in range(8):
            a(f"buffer_load_ushort v{vWG + s}, v12, s[64:67], s{58 + s//4} offen offset:{(s&3)*1024}")
        a(f"{P}_nowo:")
    def loader_mid(sLW):
        wg_roles(a)
        a.c("ones region (rows 16 and 20 of the V operand)")
        a(f"""
        v_and_b32 v12, 11, v1
        v_cmp_eq_u32 vcc, 0, v12
        v_mov_b32 v13, 0x{ONES:04x}{ONES:04x}
        v_subrev_u32 v12, 0x100, v0
        v_cndmask_b32 v20, 0, v13, vcc
        v_lshlrev_b32 v12, 4, v12
        v_mov_b32 v21, v20
        v_mov_b32 v22, v20
        v_mov_b32 v23, v20
        v_add_u32 v12, {LDS_ONES}, v12
        ds_write_b128 v12, v[20:23]
        ds_write_b128 v12, v[20:23] offset:4096
        ds_write_b128 v12, v[20:23] offset:6144
        v_and_b32 v12, 15, v1
        v_lshlrev_b32 v12, 2, v12
        v_add_u32 v12, {LDS_FLG}, v12
        v_mov_b32 v13, 0
        ds_write_b32 v12, v13
        """)
        a.c("sequence-DFT twiddles of this wave's FNet job, kept in registers")
        a(f"""
        s_and_b32 s58, s{sLW}, 1                ; mt
        s_lshr_b32 s59, s{sLW}, 1               ; kh
        s_lshl_b32 s60, s59, 4
        v_xor_b32 v12, s60, v2
        s_lshl_b32 s60, s58, 10
        s_add_u32 s60, s60, s{sR}
        v_lshl_add_u32 v12, v12, 5, s60         ; t
        s_lshl_b32 s60, s59, 5
        v_lshl_add_u32 v13, v3, 2, s60          ; first s2
        v_mul_u32_u24 v13, v12, v13
        v_lshlrev_b32 v14, 2, v12               ; 4t
        s_mov_b32 s40, 1.0                      ; p
        s_mov_b32 s41, 0                        ; q
        s_mov_b32 s42, -1.0                     ; -sigma
        s_cmp_gt_u32 s{sR}, 16
        s_cselect_b32 s42, 1.0, s42
        s_cmp_eq_u32 s{sSLOT}, 0
        s_cselect_b32 s42, 0, s42
        s_cmp_eq_u32 s{sR}, 16
        s_cselect_b32 s40, 0, s40
        s_cselect_b32 s41, 1.0, s41
        s_cmp_ge_u32 s{sJJ}, 4
        s_cselect_b32 s46, 0x80000000, 0
        s_xor_b32 s43, s40, s46                 ; mu*p
        s_xor_b32 s44, s41, s46                 ; mu*q
        s_xor_b32 s45, s42, s46
        s_xor_b32 s45, s45, 0x80000000          ; mu*sigma
        """)
        for kq in range(4):
            for T in range(4):
                a(f"""
                v_and_b32 v24, 0x7ff, v13
                v_cvt_f32_u32 v24, v24
                v_mul_f32 v24, {hex(f32bits(1/2048))}, v24
                v_cos_f32 v25, v24
                v_sin_f32 v26, v24
                v_add_u32 v13, v13, v12
                v_mul_f32 v27, s40, v25
                v_mul_f32 v28, s42, v26
                v_fmac_f32 v28, s41, v25
                v_cvt_pk_bf16_f32 v{vTW + 8*kq + T}, v27, v28
                v_mul_f32 v27, s43, v26
                v_mul_f32 v28, s45, v25
                v_fmac_f32 v28, s44, v26
                v_cvt_pk_bf16_f32 v{vTW + 8*kq + 4 + T}, v27, v28
                """)
            if kq < 3: a("v_add_u32 v13, v13, v14")
    def loader_post(sLW):
        tag_load(a)
        a(f"""
        s_lshl_b32 s47, s63, 10
        s_add_u32 s47, s47, {WS_WOF}
        s_cmp_ge_u32 s{sLW}, 2
        s_cselect_b64 s[70:71], 0, -1
        v_lshl_or_b32 v192, v{vWG+1}, 16, v{vWG}
        v_lshl_or_b32 v193, v{vWG+3}, 16, v{vWG+2}
        v_lshl_or_b32 v194, v{vWG+5}, 16, v{vWG+4}
        v_lshl_or_b32 v195, v{vWG+7}, 16, v{vWG+6}
        """)
        a.c("role B set-up")
        a(f"""
        s_lshl_b32 s58, s{sJJ}, 5
        v_add_u32 v24, s58, v2                  ; 32J+n
        v_sub_u32 v26, 0x100, v24
        v_sub_u32 v27, 0xff, v24
        s_cmp_ge_u32 s{sJJ}, 4
        s_cselect_b64 vcc, -1, 0
        v_cndmask_b32 v26, v24, v26, vcc
        v_cndmask_b32 v27, v24, v27, vcc
        v_and_b32 v28, 0x7f, v26
        v_cmp_eq_u32 vcc, 0, v28
        v_mul_u32_u24 v25, {G_CS}, v3
        v_lshl_add_u32 v{vGE}, v26, 4, v25
        v_lshl_add_u32 v{vGO}, v27, 4, v25
        v_add_u32 v{vGO}, {G_PS}, v{vGO}
        v_mov_b32 v28, 0x40000000
        v_cndmask_b32 v{vGB}, v{vGE}, v28, vcc
        v_subrev_u32 v{vFA}, 0x100, v0
        v_lshlrev_b32 v{vFA}, 7, v{vFA}
        v_add_u32 v{vFA}, {WS_F1}, v{vFA}
        s_mul_i32 s63, s{sSLOT}, {G_SS}
        s_lshr_b32 s58, s{sLW}, 1               ; kh
        s_mul_i32 s58, s58, {8*G_CS}
        s_add_u32 s63, s63, s58
        s_add_u32 s63, s63, {WS_G}
        """)
        a("s_waitcnt vmcnt(9)\ns_barrier")
        flag_addr(sLW)
        a(f"""
        s_mov_b64 exec, 0xf8000
        buffer_load_dwordx2 {vr(vFD,2)}, v{vFG}, s[{sWS}:{sWS+3}], 0 offen sc1
        s_mov_b64 exec, -1
        s_lshl_b32 s{sM0}, s{sLW}, 11
        s_and_b32 s58, s{sHEAD}, 2
        s_xor_b32 s58, s58, s{sLW}
        s_lshl_b32 s58, s58, 11
        s_lshl_b32 s{sKVO}, s{sHEAD}, 13
        s_add_u32 s{sKVO}, s{sKVO}, s58
        s_lshl_b32 s61, s{sQB}, 18
        s_add_u32 s61, s61, s{sKVO}             ; Q fragments
        v_mov_b32 v{k1.vSA}, 0
        v_and_b32 v24, 15, v1
        v_lshlrev_b32 v24, 3, v24
        v_bfe_u32 v25, v1, 4, 1
        s_and_b32 s58, s{sQB}, {OPT['xf']}
        s_lshr_b32 s58, s58, 2
        v_xor_b32 v25, s58, v25
        v_lshl_add_u32 v{vF2A}, v25, 14, v24
        """)
        common_setup()
        a("s_waitcnt vmcnt(1)\ns_barrier")
        tag_use(a, f"{P}_tagL")
        if OPT['two'] < 0:
            for x in wo_store(): a(x)
        a.c("no polling while this workgroup's urgent stores are on their way")
        a(f"s_cmp_lg_u32 s{k1.sDEL}, 0\ns_cbranch_scc1 {P}_nopre\ns_barrier\n{P}_nopre:")
        if OPT['xp']:
            a("s_mov_b64 exec, 0xf8000")
            a(f"v_cmp_ne_u64 vcc, s[{sN}:{sN+1}], {vr(vFD,2)}\ns_nop 0\ns_cbranch_vccz {P}_h1_ok")
            D = OPT['pd']
            if D == 1: poll(a, P, "h1", vFG, vFD, "0")
            else:
                ld = lambda k: a(f"buffer_load_dwordx2 {vr(40+2*k,2)}, v{vFG}, s[{sWS}:{sWS+3}], 0 offen sc1")
                for k in range(D - 1):
                    ld(k)
                    for _ in range(OPT['gap']): a("s_nop 15")
                a(f"s_mov_b32 s62, 0\n{P}_h1_spin:")
                for k in range(D):
                    ld((k + D - 1) % D)
                    a(f"s_waitcnt vmcnt({D-1})\nv_cmp_ne_u64 vcc, s[{sN}:{sN+1}], {vr(40+2*k,2)}\ns_add_u32 s62, s62, 1\ns_cbranch_vccz {P}_h1_ok")
                a(f"s_cmp_lt_u32 s62, {SPIN_MAX}\ns_cbranch_scc1 {P}_h1_spin\n{P}_h1_ok:")
            a("s_mov_b64 exec, -1")
        else: poll(a, P, "h1", vFG, vFD, "0", 0xfffff)
        stamp(a, 6)
        d0, d1 = kv_dma(0), kv_dma(1)
        for x in d0[0] + d0[1]: a(x)
        a(f"s_add_u32 m0, s{sM0}, {LDS_XB}\ns_nop 0")
        for o in (0, 1024): a(f"buffer_load_dwordx4 v{vOFF}, s[{sWS}:{sWS+3}], s61 offen offset:{o} sc1 lds")
        for x in d0[2] + d0[3] + sum(d1, []): a(x)
        if OPT['early']: a("s_barrier")
        a(f"s_mov_b32 s{sCLS}, 0\ns_waitcnt vmcnt({4 if OPT['b1'] == 6 else 0})\ns_branch {P}_b2")
    def flag_addr(sLW):
        a(f"""
        v_bfe_u32 v24, v1, 1, 2
        v_bfe_u32 v25, v1, 3, 1
        v_lshl_add_u32 v24, v24, 1, v25
        {"v_bfe_u32 v24, v1, 1, 3" if OPT['pri'] else ""}
        v_and_b32 v25, 1, v1
        v_lshl_add_u32 v24, v25, 5, v24
        s_lshl_b32 s58, s{sLW}, 3
        s_add_u32 s58, s58, 32
        v_add_u32 v24, s58, v24
        s_lshl_b32 s58, s{sQB}, 2
        s_add_u32 s58, s58, s{sLW}
        v_mov_b32 v25, s58
        s_mov_b32 vcc_lo, 0xffff0000
        s_mov_b32 vcc_hi, 0
        v_cndmask_b32 v24, v25, v24, vcc
        s_lshr_b32 s58, s{sHEAD}, 2
        s_lshl_b32 s58, s58, 7
        s_add_u32 s58, s58, {WS_FL}
        v_lshl_add_u32 v{vFG}, v24, 10, s58
        """)
    def common_setup():
        a(f"""
        s_load_dwordx2 s[{sOUT}:{sOUT+1}], s[0:1], {KA_OUT}
        s_mov_b32 s{sOUT+2}, 0x400000
        s_mov_b32 s{sOUT+3}, 0x20000
        v_lshlrev_b32 v{vOFF}, 4, v1
        v_lshlrev_b32 v28, 4, v0
        v_add_u32 v28, {LDS_XB}, v28
        v_mov_b32 v{vIDX}, 0xdddd
        """)
        attn.addr_setup(a)
        for i in range(16): a(f"v_mov_b32 v{vO+i}, 0")
        for i in range(4): a(f"v_mov_b32 v{vSN+i}, -1")
    def flag_regs():
        a(f"v_mov_b32 v{vFD}, s{sN}\nv_mov_b32 v{vFD+1}, s{sN+1}\nv_lshlrev_b32 v{vFG}, 3, v1")
    def qkv_post():
        stamp(a, 4)
        wave_flag(a)
        stamp(a, 5)
        a(f"s_barrier\ns_branch {P}_p1done")
    def comp_pre():
        wg_roles(a)
        a(f"s_mov_b64 s[46:47], 0\ns_setprio {OPT['cp']}")
        if OPT['warm']: flag_addr(sWAVE)
        a("s_waitcnt lgkmcnt(0)")
        if OPT['warm']:
            a.c("first touch of the flag lines that the loader waves poll later")
            a(f"buffer_load_dwordx2 {vr(vFD,2)}, v{vFG}, s[{sWS}:{sWS+3}], 0 offen {OPT['pfl']}")
        a(f"""
        s_cmp_lg_u32 s{sWAVE}, 0
        s_cbranch_scc1 {P}_cp1
        """)
        if OPT['codepf'] == 1:
            a.c("pull this kernel's code into L2 (each workgroup a slice)")
            a(f"""
            s_getpc_b64 s[58:59]
            {P}_pc:
            s_lshr_b32 s60, s2, 3
            s_lshl_b32 s60, s60, 4
            v_and_b32 v12, 15, v1
            v_add_u32 v12, s60, v12
            v_lshlrev_b32 v12, 7, v12
            v_min_u32 v12, {P}_end-{P}_pc, v12
            v_mov_b32 v13, s59
            v_add_co_u32 v12, vcc, s58, v12
            s_nop 1
            v_addc_co_u32 v13, vcc, 0, v13, vcc
            global_load_dword v200, v[12:13], off
            """)
        a(f"""
        s_cmp_lg_u32 s2, 0
        s_cbranch_scc1 {P}_cp1
        """)
        a.c("launch tag for the hand-off flags: never equal to a tag of an earlier launch")
        a(f"""
        s_memrealtime s[58:59]
        s_waitcnt lgkmcnt(0)
        s_or_b32 s58, s58, 1
        v_mov_b32 v206, s58
        v_mov_b32 v207, s59
        s_mov_b32 s46, 1
        {P}_cp1:
        """)
        if OPT['np'] < 0: publish('qk')
    def publish(m):
        if m == 'qk':
            a(f"""
            v_mov_b32 v{vTA}, 0
            s_mov_b64 exec, s[46:47]
            global_store_dwordx2 v{vTA}, v[206:207], s[68:69] sc1
            s_mov_b64 exec, -1
            """)
    def fnet_wait(m):
        a.c("tiles that are not urgent start once workgroup 0 is under way and has published the tag")
        a(f"s_cmp_lg_u32 s{sWAVE}, 0\ns_cbranch_scc1 {P}_go{m}\ns_cmp_eq_u32 s{sCLS}, 0\ns_cbranch_scc1 {P}_go{m}")
        tag_load(a)
        tag_use(a, f"{P}_tagw{m}")
        a(f"{P}_go{m}:")
    k1.VSCALE = 2.0 ** VS_LOG2
    k1.MIDPOS = OPT["midpos"]; k1.RMASK = OPT["rm"]; k1.CF = OPT["cf"]; k1.PSF = OPT.get("psf", "sc1"); k1.CPF = OPT["codepf"] == 2; k1.IMMC = OPT["immc"]; k1.PRI = OPT["pri"]; k1.SEQD = OPT["seqd"]; k1.RQ = OPT["rq"]; k1.RD = OPT["rd"]; k1.SPF = OPT["spf"]; k1.FLATE = OPT["flate"]; k1.NTF = OPT["ntf"]; k1.FINIT = OPT["finit"]; k1.FDEL = OPT["np"] >= 0; k1.SEQF = OPT["seqf"]; k1.AMAJ = OPT["amaj"]; k1.MIX = OPT["mix"] and not OPT["pri"]; k1.M16X = OPT.get("m16x", 0); k1.NTX = OPT.get("ntx", ""); k1.NTW = OPT.get("ntw", ""); k1.CHST = OPT.get("chst", 0); k1.SEQ = OPT["seq"]; k1.ORDER = OPT["order"]; k1.DEPTH = OPT["depth"]
    h = OPT['h']
    hooks = {h[0]: lambda m: tag_load(a), h[1]: lambda m: (tag_use(a, f"{P}_tag{m}"), flag_regs())}
    if OPT['np'] >= 0: hooks.update({OPT['np']: publish, -1: fnet_wait})
    k1.phase1(a, P, "sc1", gather, loader_mid, loader_post, comp_pre, hooks, lambda main: (tag_load(a), main and walk(a, P, 10, f'{P}_ret2', 2)), qkv_post, lambda k: pad(a, P, 10 + k, 2, f'{P}_ret2' if k == 1 else None))
    a.c("role A set-up")
    a(f"""
    s_lshl_b32 s58, s2, 7
    s_add_u32 s58, s58, {WS_F1}
    v_add_u32 v{vFA}, s58, v{vFG}
    v_mov_b32 v{vGE}, 0
    v_mov_b32 v{vGB}, 0
    v_mov_b32 v{vGO}, 0
    s_cmp_eq_u32 s{sWAVE}, 0
    s_cselect_b32 s70, 0xffff, 0
    s_mov_b32 s71, 0
    s_and_b32 s63, s{sHEAD}, 3
    s_lshl_b32 s63, s63, 2
    s_add_u32 s63, s63, s{sWAVE}            ; n tile
    s_lshl_b32 s63, s63, 15
    s_add_u32 s63, s63, {WS_WOF}
    s_lshl_b32 s58, s{sQB}, 3
    s_lshr_b32 s59, s{sHEAD}, 2
    s_add_u32 s58, s58, s59
    s_and_b32 s59, s{sQB}, {OPT['xf']}
    s_xor_b32 s58, s58, s59
    s_lshl_b32 s58, s58, 2
    s_add_u32 s58, s58, s{sWAVE}
    s_lshl_b32 s58, s58, 10
    s_add_u32 s58, s58, {WS_F2}
    v_and_b32 v{vF2A}, 7, v1
    v_lshl_add_u32 v{vF2A}, v{vF2A}, 7, s58
    """)
    common_setup()
    walk(a, P, 0, f"{P}_ret1")
    if OPT['early']:
        a("s_barrier")
        late_stores(a, P, 1)
    a(f"""
    {P}_b2:
    s_waitcnt lgkmcnt(0)
    s_barrier
    """)
    stamp(a, 7)
    a(f"ds_read_b128 {vr(vQ,4)}, v28")
    a(f"""
    ds_read_b128 {vr(vK,4)}, v{vKA}
    ds_read_b128 {vr(vV1,4)}, v{vKA} offset:1024
    ds_read_b128 {vr(vV0,4)}, v{vVA}
    """)
    if not OPT['early']: late_stores(a, P, 1)
    a(f"""
    s_waitcnt lgkmcnt(2)
    v_mfma_f32_32x32x16_bf16 {vr(vS[0],16)}, {vr(vK,4)}, {vr(vQ,4)}, 0
    s_waitcnt lgkmcnt(1)
    v_mfma_f32_32x32x16_bf16 {vr(vS[1],16)}, {vr(vV1,4)}, {vr(vQ,4)}, 0
    s_nop 10
    """)
    attn.max16(a, vT0, vS[0], True)
    attn.max16(a, vT0, vS[1], False)
    attn.set_c(a, OPT['shift'])
    a(f"""
    s_nop 1
    v_mfma_f32_32x32x16_bf16 {vr(vS[0],16)}, {vr(vK,4)}, {vr(vQ,4)}, {vr(vC,16)}
    ds_read_b128 {vr(vK,4)}, v{vKA} offset:1024
    s_mov_b32 s65, 0
    s_lshl_b32 s58, s{sQB}, 3
    s_add_u32 s58, s58, s{sWAVE}
    s_lshl_b32 s58, s58, 5
    s_add_u32 s58, s58, s{sHEAD}
    s_and_b32 s59, s{sQB}, {OPT['xf'] & 3}
    s_or_b32 s59, s59, 4
    s_lshl_b32 s59, s59, 5
    s_xor_b32 s73, s58, s59
    s_lshl_b32 s73, s73, 7
    s_add_u32 s73, s73, {WS_F2}
    s_add_u32 s59, s{sQB}, s{sWAVE}
    s_and_b32 s59, s59, {OPT['xo']}
    s_lshl_b32 s59, s59, 2
    s_xor_b32 s72, s58, s59
    s_lshl_b32 s72, s72, 10
    s_add_u32 s72, s72, {WS_OF}
    s_cmp_lt_u32 s{sWAVE}, 4
    s_cbranch_scc0 {P}_roleB
    """)
    attn_role(a, P, 'A')
    a(f".p2align 6\n{P}_roleB:")
    pad(a, P, 0)
    if OPT['dry'] & 1: a("s_nop 0")
    attn_role(a, P, 'B')
    a(f"{P}_attn_done:")
    pad(a, P, 1)
    a(f"""
    s_waitcnt lgkmcnt(0)
    v_smfmac_f32_32x32x32_bf16 {vr(vO,16)}, {vr(vV1,4)}, {vr(vS[1]+8,8)}, v{vIDX}
    s_cmp_lg_u32 s65, 0
    s_nop 9
    s_cbranch_scc1 {P}_fin
    """)
    a.c("run-time check of the max stand-in: row sum below 2^120 and all accumulators finite")
    a(f"v_add_f32 v{vT0}, abs(v{vO}), abs(v{vO+1})")
    for i in range(2, 8): a(f"v_add_f32 v{vT0}, v{vT0}, abs(v{vO+i})")
    a(f"""
    v_mov_b32 v{vT1}, 0x7b800000
    v_cmp_nlt_f32 vcc, v{vO+8}, v{vT1}
    v_mov_b32 v{vT1}, 0x7f000000
    v_cmp_nlt_f32 s[60:61], v{vT0}, v{vT1}
    s_nop 1
    s_or_b64 vcc, vcc, s[60:61]
    s_cbranch_scc1 {P}_fallback
    {P}_fin:
    v_rcp_f32 v{vT0}, v{vO+8}
    s_nop 0
    """)
    for i in range(8): a(f"v_mul_f32 v{vO+i}, v{vO+i}, v{vT0}")
    for i in range(4): a(f"v_cvt_pk_bf16_f32 v{vO+i}, v{vO+2*i}, v{vO+2*i+1}")
    for i in range(4): a(f"v_min_u32 v{vO+i}, -2, v{vO+i}")
    a(f"buffer_store_dwordx4 {vr(vO,4)}, v{vOFF}, s[{sWS}:{sWS+3}], s72 offen sc1")
    stamp(a, 8)
    a(f"""
    v_and_b32 v2, 31, v0
    v_bfe_u32 v3, v0, 5, 1
    s_cmp_lt_u32 s{sWAVE}, 4
    s_cbranch_scc1 {P}_tailA
    """)
    ACC = 24
    pad(a, P, 2)
    a("s_waitcnt vmcnt(2)")
    if OPT['bb']: a("s_barrier")
    for kq in range(4):
        for ty in range(2):
            for par in range(2):
                i = 4*kq + 2*ty + par
                c = "0" if kq == 0 and ty == 0 else vr(ACC+16*par,16)
                a(f"v_mfma_f32_32x32x16_bf16 {vr(ACC+16*par,16)}, {vr(vTW+8*kq+4*ty,4)}, {vr(vG+4*i,4)}, {c}")
    a(f"""
    s_sub_u32 s60, s{sWAVE}, 4
    s_lshl_b32 s61, s60, 12
    s_add_u32 s61, s61, {LDS_XB}
    v_add_u32 v11, s61, v{vOFF}
    s_xor_b32 s61, s60, 2
    s_lshl_b32 s61, s61, 12
    s_add_u32 s61, s61, {LDS_XB}
    v_add_u32 v12, s61, v{vOFF}
    s_lshl_b32 s61, s{sWAVE}, 2
    s_add_u32 s61, s61, {LDS_FLG + 16}
    v_mov_b32 v8, s61
    v_xor_b32 v9, 8, v8
    v_lshlrev_b32 v4, 2, v2
    v_lshl_add_u32 v4, v3, 18, v4
    s_and_b32 s61, s60, 1
    s_lshl_b32 s61, s61, 1
    s_lshr_b32 s60, s60, 1
    s_add_u32 s61, s61, s60
    s_lshl_b32 s61, s61, 9
    s_add_u32 s61, s61, s{sR}
    s_lshl_b32 s61, s61, 11
    s_lshl_b32 s60, s{sJJ}, 7
    s_add_u32 s61, s61, s60
    """)
    for q in range(4):
        a(f"ds_write_b128 v11, {vr(ACC + 16*(q>>1) + 8 + 4*(q&1), 4)} offset:{q*1024}")
    if OPT['bb']:
        a(f"""
        ds_write_b32 v8, v8
        {P}_xwait:
        ds_read_b32 v10, v9
        s_waitcnt lgkmcnt(0)
        v_cmp_eq_u32 vcc, 0, v10
        s_nop 0
        s_cbranch_vccnz {P}_xwait
        """)
    else: a("s_waitcnt lgkmcnt(0)\ns_barrier")
    for q in range(4): a(f"ds_read_b128 {vr(56 + 4*q, 4)}, v12 offset:{q*1024}")
    a("s_waitcnt lgkmcnt(0)")
    for r in range(8):
        a(f"v_add_f32 v{ACC+r}, v{ACC+r}, v{56+r}")
        a(f"v_add_f32 v{ACC+16+r}, v{ACC+16+r}, v{64+r}")
        a(f"v_cvt_pk_bf16_f32 v{72+r}, v{ACC+r}, v{ACC+16+r}")
    if OPT['bw']:
        a.c("keep these stores out of the way of the O fetches")
        a(f"""
        v_and_b32 v9, 7, v0
        v_lshlrev_b32 v9, 2, v9
        v_add_u32 v9, {LDS_FLG}, v9
        {P}_owait:
        ds_read_b32 v10, v9
        s_waitcnt lgkmcnt(0)
        v_cmp_eq_u32 vcc, 0, v10
        s_nop 0
        s_cbranch_vccnz {P}_owait
        """)
    for r in range(8):
        a(f"s_add_u32 s60, s61, {(8*(r//4) + r%4) * 32 * 2048}")
        a(f"buffer_store_dword v{72+r}, v4, s[{sOUT}:{sOUT+3}], s60 offen {OPT['oa']}")
    a(f"s_branch {P}_done")
    ACC, LD, BUF = 24, 40, 72
    sPEND, sDONE, sM = 64, 66, 67
    def loads(k):
        for i in range(4): a(f"buffer_load_dwordx4 {vr(LD+16*k+4*i,4)}, v{vOFF}, s[{sWS}:{sWS+3}], s{58+k} offen offset:{i*1024} sc1")
    pad(a, P, 3)
    a(f"""
    {P}_tailA:
    s_lshl_b32 s60, s{sQB}, 3
    s_lshr_b32 s61, s{sHEAD}, 2
    s_add_u32 s60, s60, s61
    s_add_u32 s59, s61, s{sQB}
    s_and_b32 s59, s59, {OPT['xo']}
    s_lshl_b32 s59, s59, 12
    s_lshl_b32 s58, s60, 15
    s_lshl_b32 s61, s{sWAVE}, 13
    s_add_u32 s58, s58, s61
    s_xor_b32 s58, s58, s59
    s_add_u32 s58, s58, {WS_OF}             ; this wave fetches heads 8w .. 8w+7, two groups of four
    s_xor_b32 s59, s58, 4096
    """)
    def flags(L):
        a(f"""
        v_cmp_ne_u64 vcc, s[{sN}:{sN+1}], {vr(vF2,2)}
        s_cmp_lt_u32 s62, {SPIN_MAX}
        s_cselect_b32 s63, vcc_lo, 0
        """)
        for k in range(2):
            a(f"""
            s_bitcmp1_b32 s{sPEND}, {k+2}
            s_cbranch_scc0 {L}{k}
            s_and_b32 s57, s63, {15 << 4*k}
            s_cbranch_scc1 {L}{k}
            """)
            stamp(a, 11)
            loads(k)
            a(f"s_xor_b32 s{sPEND}, s{sPEND}, {5 << k}\n{L}{k}:")
    a(f"s_mov_b32 s{sPEND}, 12\ns_mov_b32 s62, 0\ns_waitcnt vmcnt(1)")
    a(f"""
    v_add_u32 v12, s61, v{vOFF}
    v_and_b32 v11, 7, v0
    v_lshlrev_b32 v11, 2, v11
    v_add_u32 v11, {LDS_FLG}, v11
    s_lshl_b32 s61, s{sWAVE}, 3
    s_add_u32 s61, s61, {LDS_FLG}
    v_mov_b32 v10, s61
    v_lshlrev_b32 v4, 11, v2
    v_lshl_add_u32 v4, v3, 5, v4
    s_lshl_b32 s60, s60, 16
    s_and_b32 s61, s{sHEAD}, 3
    s_lshl_b32 s61, s61, 2
    s_add_u32 s61, s61, s{sWAVE}
    s_lshl_b32 s61, s61, 6
    s_add_u32 s60, s60, s61
    s_add_u32 s60, s60, 1024
    s_mov_b32 s{sDONE}, 0
    """)
    for i in range(16): a(f"v_mov_b32 v{ACC+i}, 0")
    a("s_barrier")
    stamp(a, 9)
    flags(f"{P}_f0")
    a(f"s_and_b32 s57, s{sPEND}, 12\ns_cbranch_scc0 {P}_round\n{f2load()}")
    a(f"""
    {P}_round:
    s_add_u32 s62, s62, 1
    s_waitcnt vmcnt(0)
    """)
    if OPT['trace']:
        a(f"s_cmp_eq_u32 s{sPEND}, 0\ns_cbranch_scc1 {P}_notr\ns_memrealtime s[74:75]\ns_waitcnt lgkmcnt(0)")
        for r in range(1, 7): a(f"s_cmp_eq_u32 s62, {r}\ns_cselect_b32 s{76+r}, s74, s{76+r}")
        a(f"""
        s_lshl_b32 s89, s89, 4
        s_or_b32 s89, s89, s{sPEND}
        s_bcnt1_i32_b32 s75, s{sDONE}
        s_lshl_b32 s90, s90, 4
        s_or_b32 s90, s90, s75
        s_mov_b32 s86, s74
        {P}_notr:
        """)
    for k in range(2):
        r = LD + 16*k
        a(f"s_bitcmp1_b32 s{sPEND}, {k}\ns_cbranch_scc0 {P}_chk{k}")
        a(f"v_max3_u32 v8, v{r}, v{r+1}, v{r+2}")
        for i in range(3, 15, 2): a(f"v_max3_u32 v8, v8, v{r+i}, v{r+i+1}")
        a(f"""
        v_max_u32 v8, v8, v{r+15}
        v_cmp_eq_u32 vcc, -1, v8
        s_cmp_lt_u32 s62, {SPIN_MAX}
        s_cselect_b64 vcc, vcc, 0
        s_cbranch_vccz {P}_pub{k}
        """)
        loads(k)
        a(f"s_branch {P}_chk{k}")
        if k == 0: pad(a, P, 4)
        a(f"{P}_pub{k}:")
        stamp(a, 10)
        for i in range(4): a(f"ds_write_b128 v12, {vr(r+4*i,4)} offset:{k*4096+i*1024}")
        a(f"""
        ds_write_b32 v10, v10 offset:{4*k}
        s_bitset0_b32 s{sPEND}, {k}
        {P}_chk{k}:
        """)
    a(f"s_and_b32 s57, s{sPEND}, 12\ns_cbranch_scc0 {P}_noflag")
    flags(f"{P}_f1")
    a(f"s_and_b32 s57, s{sPEND}, 12\ns_cbranch_scc0 {P}_noflag\n{f2load()}\n{P}_noflag:")
    a(f"""
    ds_read_b32 v8, v11
    s_waitcnt lgkmcnt(0)
    v_cmp_ne_u32 vcc, 0, v8
    s_nop 0
    s_andn2_b32 s{sM}, vcc_lo, s{sDONE}
    s_and_b32 s{sM}, s{sM}, 0xff
    s_cbranch_scc0 {P}_round
    """)
    if OPT['half']:
        a.c("with a fetch in flight come back to it after four groups at most")
        a(f"""
        s_and_b32 s57, s{sM}, 15
        s_cselect_b32 s57, s57, s{sM}
        s_cmp_eq_u32 s{sPEND}, 0
        s_cselect_b32 s{sM}, s{sM}, s57
        """)
    a(f"""
    s_or_b32 s{sDONE}, s{sDONE}, s{sM}
    s_ff1_i32_b32 s61, s{sM}
    s_lshl_b32 s61, s61, 12
    v_add_u32 v9, s61, v{vOFF}
    """)
    for i in range(4): a(f"ds_read_b128 {vr(BUF+4*i,4)}, v9 offset:{i*1024}")
    for g in range(8):
        a(f"""
        s_bitcmp1_b32 s{sM}, {g}
        s_cbranch_scc0 {P}_grp{g}
        """)
        for i in range(4):
            a(f"s_waitcnt lgkmcnt(3)")
            a(f"v_mfma_f32_32x32x16_bf16 {vr(ACC,16)}, {vr(vWO+16*g+4*i,4)}, {vr(BUF+4*i,4)}, {vr(ACC,16)}")
            if i == 0:
                a(f"""
                s_bitset0_b32 s{sM}, {g}
                s_ff1_i32_b32 s61, s{sM}
                s_and_b32 s61, s61, 7
                v_lshl_add_u32 v9, s61, 12, v{vOFF}
                """)
            a(f"ds_read_b128 {vr(BUF+4*i,4)}, v9 offset:{i*1024}")
        a(f"{P}_grp{g}:")
        if g == 0: pad(a, P, 5)
        if g == 4: pad(a, P, 6, 1, f"{P}_ret1")
    a(f"""
    s_cmp_lg_u32 s{sDONE}, 0xff
    s_cbranch_scc1 {P}_round
    s_nop 8
    """)
    F0 = 40
    for i in range(8): a(f"v_cvt_pk_bf16_f32 v{F0+i}, v{ACC+2*i}, v{ACC+2*i+1}")
    a(f"buffer_store_dwordx4 {vr(F0,4)}, v4, s[{sOUT}:{sOUT+3}], s60 offen {OPT['ob']}")
    a(f"buffer_store_dwordx4 {vr(F0+4,4)}, v4, s[{sOUT}:{sOUT+3}], s60 offen offset:16 {OPT['ob']}")
    stamp(a, 12)
    a(f"{P}_done:")
    stamp_flush(a, 0)
    a(f"{P}_end:\ns_endpgm\n{P}_fallback:")
    attn.addr_setup(a)
    a(f"""
    v_mov_b32 v{vT0}, 0xff800000
    s_movk_i32 s66, 64
    {P}_maxloop:
    ds_read_b128 {vr(vK,4)}, v{vKA}
    v_add_u32 v{vKA}, 0x400, v{vKA}
    s_waitcnt lgkmcnt(0)
    v_mfma_f32_32x32x16_bf16 {vr(vS[0],16)}, {vr(vK,4)}, {vr(vQ,4)}, 0
    s_nop 12
    """)
    attn.max16(a, vT0, vS[0], False)
    a(f"""
    s_sub_u32 s66, s66, 1
    s_cmp_lg_u32 s66, 0
    s_cbranch_scc1 {P}_maxloop
    """)
    attn.set_c(a, 0.0)
    a(f"v_mov_b32 v{vKA}, v{vOFF}")
    attn.prime(a)
    a(f"""
    s_mov_b32 s65, 1
    s_movk_i32 s66, 8
    """)
    a.c("fallback pass (true row max)")
    a(f".p2align 6\n{P}_loop:")
    attn.iteration(a, 6)
    a(f"""
    s_sub_u32 s66, s66, 1
    s_cmp_lg_u32 s66, 0
    s_cbranch_scc1 {P}_loop
    s_branch {P}_attn_done
    """)
    return kernel_header(name) + a.text() + kernel_desc(name, VGPRS, 102)

def header():
    ref = open(f"cdna_kernels/{NAME}.s.ref").read().split("\n")
    return "\n".join(l for l in ref if l.startswith(";") and "@launch" not in l and "Override" not in l and "grid=ceil" not in l) + "\n"
def gen(aslist=True):
    s = header()
    if aslist: s += f"; @launch kernel={NAME}_kernel grid=(256,1,1) block=(512,1,1) lds={LDS_BYTES}\n"
    else: s += f"; @launch grid=(256,1,1) block=(512,1,1) lds={LDS_BYTES}\n"
    s += '.amdgcn_target "amdgcn-amd-amdhsa--gfx950"\n'
    return s + gen_kernel(NAME + "_kernel")
if __name__ == "__main__":
    open(f"fused.s", "w").write(gen(False))
    open(f"fused_list.s", "w").write(gen(True))
```

```python
import sys
from asmlib import *
import asmlib, k1, attn
from k1 import f32bits, G_PS, G_CS, G_SS, G_TS, sWAVE, sWS, sXCD, sI, sJ, sFL, sCLS, p1store
from attn import vKA, vVA, vIDX, vVST, vT0, vT1, vOFF, vQ, vK, vV0, vV1, vS, vC, vO, LDS_K, LDS_V, LDS_ONES
NAME = "concat_heads__spectral_fnet__softmax_full_mha__prompt"
LDS_XB = LDS_ONES + 10240
LDS_FLG = LDS_XB + 16384
LDS_BYTES = LDS_FLG + 64
VGPRS = 224
vTW, vG, vWO = 88, 120, 88
sN = 48
sHEAD, sQB, sR, sJJ, sSLOT = 50, 51, 52, 53, 54
sKVO, sRUN, sM0 = 55, 56, 57
sOUT = 20
SHIFT = 100.0
VS_LOG2 = 32
ONES = (127 + VS_LOG2) << 7
SPIN_MAX = 0x40000
OPT = dict(codepf=2, prio=1, midpos=0, rm=3, order='gmi', depth=2, cf=192, two=2, mix=1, spf=0, half=1, amaj=1, ntx='', seq='01234567', h=(20, 26), np=7, seqf='04261537', flate=1, ntf='', finit=4, b1=99, xp=1, wide=1, bx=14, oa='sc1', ob='', pfl='sc1', sfl='sc1', early=0, warm=2, gm=1, tsn=(17, 19), tf=(50, 63), xo=7, xf=7, tfl=59, fm=1, sl=2, pri=1, seqd='04152637', rq=4, immc=1, cp=2, rd=0, imm=1, pm=(23, 27), shift=102.0, pq=(5, 10), bw=0, trace=0, pd=1, gap=0, bb=1, pe=((48, 56, 61), (49, 57, 63)), dry=0, ts=(0, 3), ta=(0, 8), tc=(6, 9))
vTA, vTD = 203, 204

def wg_roles(a):
    a(f"""
    s_and_b32 s58, s2, 7
    s_lshr_b32 s59, s2, 3
    s_lshl_b32 s{sHEAD}, s58, 2
    s_and_b32 s60, s59, 3
    s_add_u32 s{sHEAD}, s{sHEAD}, s60       ; head
    s_lshr_b32 s{sQB}, s59, 2               ; q block
    """)
    if OPT['fm']:
        a(f"""
        s_and_b32 s{sJJ}, s58, 3
        s_cmp_ge_u32 s59, 16
        s_cselect_b32 s61, 7, 0
        s_xor_b32 s{sJJ}, s{sJJ}, s61
        s_and_b32 s{sSLOT}, s59, 7
        s_lshl_b32 s{sSLOT}, s{sSLOT}, 1
        s_lshr_b32 s61, s58, 2
        s_add_u32 s{sSLOT}, s{sSLOT}, s61       ; slot
        s_lshr_b32 s60, s59, 2
        s_and_b32 s60, s60, 2
        """)
    else:
        a(f"""
        s_mov_b32 s{sJJ}, s{sQB}
        s_lshl_b32 s{sSLOT}, s58, 1
        s_and_b32 s61, s60, 1
        s_add_u32 s{sSLOT}, s{sSLOT}, s61       ; slot
        """)
    a(f"""
    s_sub_u32 s61, 32, s{sSLOT}
    s_cmp_eq_u32 s{sSLOT}, 0
    s_cselect_b32 s61, 16, s61
    s_cmp_lt_u32 s60, 2
    s_cselect_b32 s{sR}, s{sSLOT}, s61      ; residue r'
    s_mov_b32 s{sFL}, 0
    """)

def tag_load(a):
    a(f"v_mov_b32 v{vTA}, 0\nglobal_load_dwordx2 {vr(vTD,2)}, v{vTA}, s[68:69] sc1")

def tag_use(a, L):
    a(f"""
    s_mov_b32 s62, 0
    {L}_spin:
    s_waitcnt vmcnt(0)
    v_readfirstlane_b32 s{sN}, v{vTD}
    v_readfirstlane_b32 s{sN+1}, v{vTD+1}
    s_cmp_lg_u32 s{sN}, 0
    s_cbranch_scc1 {L}_ok
    """)
    tag_load(a)
    a(f"""
    s_add_u32 s62, s62, 1
    s_cmp_lt_u32 s62, {SPIN_MAX}
    s_cbranch_scc1 {L}_spin
    {L}_ok:
    """)

def poll(a, P, tag, vaddr, vd, soff, mask=None, fl='sc1'):
    a(f"""
    s_mov_b32 s62, 0
    {P}_{tag}_spin:
    buffer_load_dwordx2 {vr(vd,2)}, v{vaddr}, s[{sWS}:{sWS+3}], {soff} offen {OPT['pfl']}
    s_waitcnt vmcnt(0)
    v_cmp_ne_u64 vcc, s[{sN}:{sN+1}], {vr(vd,2)}
    s_add_u32 s62, s62, 1
    {f"s_and_b64 vcc, vcc, {mask}" if mask else ""}
    s_cbranch_vccz {P}_{tag}_ok
    s_cmp_lt_u32 s62, {SPIN_MAX}
    s_cbranch_scc1 {P}_{tag}_spin
    {P}_{tag}_ok:
    """)

def utile(a, t, ins, late=()):
    cur, nxt = vS[t & 1], vS[(t + 1) & 1]
    tt = t & 7
    e = lambda i: a(f"v_exp_f32 v{cur+i}, v{cur+i}")
    pq, p0 = (8, 12) if t in late else OPT['pq']
    def extra(k):
        for x in ins.get(k, []): a(x)
    e(0); e(1)
    a("s_waitcnt lgkmcnt(0)")
    if t > 0: a(f"v_smfmac_f32_32x32x32_bf16 {vr(vO,16)}, {vr(vV1,4)}, {vr(nxt+8,8)}, v{vIDX}")
    if t in late: a(f"ds_read_b128 {vr(vK,4)}, v{vKA} offset:{(t+1)*1024}")
    a(f"ds_read_b128 {vr(vV1,4)}, v{vVA} offset:{tt*1024+512}")
    extra(0)
    for i in range(2, pq): e(i)
    if t in late: a("s_waitcnt lgkmcnt(1)")
    if t < 63: a(f"v_mfma_f32_32x32x16_bf16 {vr(nxt,16)}, {vr(vK,4)}, {vr(vQ,4)}, {vr(vC,16)}")
    if t < 62 and t + 1 not in late: a(f"ds_read_b128 {vr(vK,4)}, v{vKA} offset:{(t+2)*1024}")
    extra(1)
    for i in range(pq, p0): e(i)
    a(f"v_smfmac_f32_32x32x32_bf16 {vr(vO,16)}, {vr(vV0,4)}, {vr(cur,8)}, v{vIDX}")
    if t < 63: a(f"ds_read_b128 {vr(vV0,4)}, v{vVA} offset:{(tt+1)*1024}")
    extra(2)
    for i in range(p0, 16): e(i)
    if tt == 7 and t < 63: a(f"v_add_u32 v{vVA}, v{vVST}, v{vVA}")

def kv_dma(c):
    ld = lambda o: f"buffer_load_dwordx4 v{vOFF}, s[{sWS}:{sWS+3}], s67 offen offset:{o} sc1 lds"
    k = [f"s_add_u32 m0, s{sM0}, {LDS_K + c*8192}", f"s_add_u32 s67, s{sKVO}, {WS_KF + c*0x40000}", ld(0)]
    v = [f"s_add_u32 m0, s{sM0}, {LDS_V + c*8192}", f"s_add_u32 s67, s{sKVO}, {WS_VF + c*0x40000}", ld(0)]
    return k, [ld(1024)], v, [ld(1024)]

vF2, vF2A, vSN = 216, 218, 220
vGE, vGB, vGO, vFA, vFD, vFG = 184, 185, 186, 187, 188, 190
def pad(a, P, k, bit=1, last=None):
    if OPT['dry'] & bit: a(f"{P}_pad{k}:\ns_cbranch_execz {last or f'{P}_pad{k+1}'}")
def walk(a, P, k, ret, bit=1):
    if OPT['dry'] & bit: a(f"s_mov_b64 exec, 0\ns_branch {P}_pad{k}\n{ret}:\ns_mov_b64 exec, -1")
def wo_store(): return ["s_mov_b64 exec, s[70:71]", f"buffer_store_dwordx4 v[192:195], v{vOFF}, s[{sWS}:{sWS+3}], s47 offen sc1", "s_mov_b64 exec, -1"]
def f2load(): return f"buffer_load_dwordx2 {vr(vF2,2)}, v{vF2A}, s[{sWS}:{sWS+3}], 0 offen sc1"
def late_stores(a, P, cls):
    if cls <= OPT['immc']: return
    a(f"s_cmp_lg_u32 s{sCLS}, {cls}\ns_cbranch_scc1 {P}_nost{cls}")
    for n in range(8): a(p1store(n))
    a(f"{P}_nost{cls}:")
def wave_flag(a):
    a(f"""
    s_mov_b64 exec, {0xffff if OPT['wide'] else 1}
    s_waitcnt vmcnt(0)
    buffer_store_dwordx2 {vr(vFD,2)}, v{vFG}, s[{sWS}:{sWS+3}], s{sFL} offen {OPT['sfl']}
    s_mov_b64 exec, -1
    """)

def attn_role(a, P, role):
    BX = OPT['bx']
    B1, TS, TA, (TP, TC) = OPT['b1'], OPT['ts'], OPT['ta'], OPT['tc']
    DM = {2: (TC, TC), 3: (TC+1, TC+1), 4: (18, 19), 5: (20, 21), 6: (22, 23), 7: (24, 25)}
    fl = lambda va: f"buffer_load_dwordx2 {vr(vFD,2)}, v{va}, s[{sWS}:{sWS+3}], 0 offen {OPT['pfl']}"
    def check(tag, va, mask=None):
        a(f"s_waitcnt vmcnt(0)\nv_cmp_ne_u64 vcc, s[{sN}:{sN+1}], {vr(vFD,2)}\ns_nop 0")
        if mask: a(f"s_and_b64 vcc, vcc, {mask}")
        a(f"s_cbranch_vccz {P}_{tag}_ok")
        poll(a, P, tag, va, vFD, "0", mask)
    for t in range(64):
        ins = {}
        add = lambda k, l: ins.setdefault(k, []).extend(l)
        if role == 'B':
            if t == TP or t == BX: add(0, [fl(vFG)])
            if t == TC:
                check("c2", vFG, 0xff << 16)
                stamp(a, 1)
            if t == 18: check("c4", vFG)
            for c, (tk, tv) in DM.items():
                d = kv_dma(c)
                if t == tk and t == tv: add(0, d[0] + d[1]); add(2, d[2] + d[3])
                elif t == tk: add(0, d[0]); add(2, d[1])
                elif t == tv: add(0, d[2]); add(2, d[3])
            if t == 26: add(0, [fl(vFA)])
            if t == 30: check("all", vFA)
            if t == B1: a("s_waitcnt vmcnt(0)")
        else:
            for cls in (2, 3):
                if t == TS[cls-2]: late_stores(a, P, cls)
            for cls in (1, 2):
                if t == TA[cls-1]:
                    a(f"s_cmp_lg_u32 s{sCLS}, {cls}\ns_cbranch_scc1 {P}_nofl{cls}")
                    wave_flag(a)
                    stamp(a, 6)
                    a(f"{P}_nofl{cls}:")
        if t == BX or (t == 30 and role == 'A'): a("s_waitcnt vmcnt(0)")
        if t in (B1, BX, 30): a("s_barrier")
        if t == BX: stamp(a, 2 if role == 'B' else 13)
        if t == 30: stamp(a, 3 if role == 'B' else 14)
        if role == 'A' and t == BX:
            add(0, [f"s_mov_b64 exec, s[70:71]",
                    f"buffer_store_dwordx2 {vr(vFD,2)}, v{vFA}, s[{sWS}:{sWS+3}], 0 offen sc1",
                    "s_mov_b64 exec, -1"])
        if role == 'A' and 30 <= t < 58:
            SL = OPT['sl']
            for k, i in ((SL, t - 30),) + ((((SL + 2) % 3, t - 2),) if t < 34 else ()):
                r = 59 if i >= 28 else 58
                if OPT['imm']:
                    if i % 4 == 0: add(k, [f"s_add_u32 s{r}, s63, {i * 0x400}"])
                    add(k, [f"buffer_load_dwordx4 {vr(vWO+4*i,4)}, v{vOFF}, s[{sWS}:{sWS+3}], s{r} offen offset:{(i % 4) * 1024} sc1"])
                else:
                    add(k, [f"s_add_u32 s58, s63, {i * 0x400}",
                            f"buffer_load_dwordx4 {vr(vWO+4*i,4)}, v{vOFF}, s[{sWS}:{sWS+3}], s58 offen sc1"])
        if t == OPT['tsn'][role == 'B']:
            add(2, [f"buffer_store_dwordx4 {vr(vSN,4)}, v{vOFF}, s[{sWS}:{sWS+3}], s72 offen sc1"])
        if role == 'A' and t in OPT['tf']:
            add(2, [f2load()])
        if role == 'B' and t == OPT['two']: add(2, wo_store())
        if role == 'B' and t == 31:
            add(2, [f"v_mov_b32 v{vSN}, s{sN}", f"v_mov_b32 v{vSN+1}, s{sN+1}"])
        if role == 'B' and t == OPT['tfl']:
            add(2, ["; early hint for the O fragments of waves w-4 and w: readers check the data for the fill words",
                    "s_mov_b32 exec_hi, 0",
                    f"buffer_store_dwordx2 {vr(vSN,2)}, v{vF2A}, s[{sWS}:{sWS+3}], s73 offen sc1",
                    "s_mov_b32 exec_hi, -1"])
        if role == 'B' and 32 <= t < 48:
            i = t - 32
            kq, ty, par = i >> 2, (i >> 1) & 1, i & 1
            va = vGO if par else (vGB if ty else vGE)
            if par == 0 or not OPT['imm']: add(OPT['sl'], [f"s_add_u32 s58, s63, {ty*G_TS + 2*kq*G_CS}"])
            add(OPT['sl'], [f"buffer_load_dwordx4 {vr(vG+4*i,4)}, v{va}, s[{sWS}:{sWS+3}], s58 offen sc1"])
        if OPT['prio']:
            pr = {0: 3, 3: 2, 5: 1, 6: 3, 10: 2, 12: 1} if B1 == 6 else {0: 3, BX-6: 2, BX-2: 1}
            pr.update({BX: 3, OPT['pm'][0]: 2, OPT['pm'][1]: 1, 30: 3})
            pr.update(zip(OPT['pe'][role == 'B'], (2, 1, 0)))
            if t in pr: add(1, [f"s_setprio {pr[t]}"])
        utile(a, t, ins, (15,) if BX == 15 else ())
    if role == 'A': a(f"s_branch {P}_attn_done")

def gen_kernel(name):
    a = Asm(); P = "F"
    stamp_init(a)
    vWG = 32
    def gather(sLW):
        a.c("gather one Wo fragment (loader waves of tiles that are not urgent)")
        a(f"""
        s_mov_b32 s66, 0x80000
        s_mov_b32 s67, 0x20000
        """)
        if OPT['gm']:
            a(f"""
            s_lshr_b32 s58, s2, 3
            s_lshr_b32 s63, s58, 2
            s_lshl_b32 s63, s63, 1
            s_and_b32 s59, s58, 1
            s_add_u32 s63, s63, s59
            s_add_u32 s63, s63, 4
            s_and_b32 s59, s58, 2
            s_min_u32 s59, s59, s{sXCD}
            s_and_b32 s58, s58, 7
            s_cmp_eq_u32 s{sXCD}, 3
            s_cselect_b32 s63, s58, s63
            s_cselect_b32 s59, 1, s59
            s_lshl_b32 s63, s63, 3
            s_and_b32 s58, s2, 7
            s_add_u32 s63, s63, s58
            s_lshl_b32 s63, s63, 2
            s_add_u32 s63, s63, s{sLW}
            s_cmp_eq_u32 s59, 0
            """)
        else:
            a(f"""
            s_lshl_b32 s63, s2, 1
            s_add_u32 s63, s63, s{sLW}
            s_cmp_ge_u32 s{sLW}, 2
            """)
        a(f"""
        s_cselect_b64 s[70:71], 0, -1
        s_cbranch_scc1 {P}_nowo
        s_and_b32 s58, s63, 31
        s_lshl_b32 s58, s58, 14
        s_lshr_b32 s59, s63, 5
        s_lshl_b32 s59, s59, 6
        s_add_u32 s58, s58, s59
        v_and_b32 v12, 3, v2
        v_lshrrev_b32 v13, 3, v2
        v_lshl_add_u32 v12, v13, 2, v12
        v_bfe_u32 v13, v2, 2, 1
        v_lshl_add_u32 v12, v13, 4, v12
        v_lshlrev_b32 v12, 1, v12
        v_lshl_add_u32 v12, v3, 12, v12
        s_add_u32 s59, s58, 0x2000
        """)
        for s in range(8):
            a(f"buffer_load_ushort v{vWG + s}, v12, s[64:67], s{58 + s//4} offen offset:{(s&3)*1024}")
        a(f"{P}_nowo:")
    def loader_mid(sLW):
        wg_roles(a)
        a.c("ones region (rows 16 and 20 of the V operand)")
        a(f"""
        v_and_b32 v12, 11, v1
        v_cmp_eq_u32 vcc, 0, v12
        v_mov_b32 v13, 0x{ONES:04x}{ONES:04x}
        v_subrev_u32 v12, 0x100, v0
        v_cndmask_b32 v20, 0, v13, vcc
        v_lshlrev_b32 v12, 4, v12
        v_mov_b32 v21, v20
        v_mov_b32 v22, v20
        v_mov_b32 v23, v20
        v_add_u32 v12, {LDS_ONES}, v12
        ds_write_b128 v12, v[20:23]
        ds_write_b128 v12, v[20:23] offset:4096
        ds_write_b128 v12, v[20:23] offset:6144
        v_and_b32 v12, 15, v1
        v_lshlrev_b32 v12, 2, v12
        v_add_u32 v12, {LDS_FLG}, v12
        v_mov_b32 v13, 0
        ds_write_b32 v12, v13
        """)
        a.c("sequence-DFT twiddles of this wave's FNet job, kept in registers")
        a(f"""
        s_and_b32 s58, s{sLW}, 1                ; mt
        s_lshr_b32 s59, s{sLW}, 1               ; kh
        s_lshl_b32 s60, s59, 4
        v_xor_b32 v12, s60, v2
        s_lshl_b32 s60, s58, 10
        s_add_u32 s60, s60, s{sR}
        v_lshl_add_u32 v12, v12, 5, s60         ; t
        s_lshl_b32 s60, s59, 5
        v_lshl_add_u32 v13, v3, 2, s60          ; first s2
        v_mul_u32_u24 v13, v12, v13
        v_lshlrev_b32 v14, 2, v12               ; 4t
        s_mov_b32 s40, 1.0                      ; p
        s_mov_b32 s41, 0                        ; q
        s_mov_b32 s42, -1.0                     ; -sigma
        s_cmp_gt_u32 s{sR}, 16
        s_cselect_b32 s42, 1.0, s42
        s_cmp_eq_u32 s{sSLOT}, 0
        s_cselect_b32 s42, 0, s42
        s_cmp_eq_u32 s{sR}, 16
        s_cselect_b32 s40, 0, s40
        s_cselect_b32 s41, 1.0, s41
        s_cmp_ge_u32 s{sJJ}, 4
        s_cselect_b32 s46, 0x80000000, 0
        s_xor_b32 s43, s40, s46                 ; mu*p
        s_xor_b32 s44, s41, s46                 ; mu*q
        s_xor_b32 s45, s42, s46
        s_xor_b32 s45, s45, 0x80000000          ; mu*sigma
        """)
        for kq in range(4):
            for T in range(4):
                a(f"""
                v_and_b32 v24, 0x7ff, v13
                v_cvt_f32_u32 v24, v24
                v_mul_f32 v24, {hex(f32bits(1/2048))}, v24
                v_cos_f32 v25, v24
                v_sin_f32 v26, v24
                v_add_u32 v13, v13, v12
                v_mul_f32 v27, s40, v25
                v_mul_f32 v28, s42, v26
                v_fmac_f32 v28, s41, v25
                v_cvt_pk_bf16_f32 v{vTW + 8*kq + T}, v27, v28
                v_mul_f32 v27, s43, v26
                v_mul_f32 v28, s45, v25
                v_fmac_f32 v28, s44, v26
                v_cvt_pk_bf16_f32 v{vTW + 8*kq + 4 + T}, v27, v28
                """)
            if kq < 3: a("v_add_u32 v13, v13, v14")
    def loader_post(sLW):
        tag_load(a)
        a(f"""
        s_lshl_b32 s47, s63, 10
        s_add_u32 s47, s47, {WS_WOF}
        v_lshl_or_b32 v192, v{vWG+1}, 16, v{vWG}
        v_lshl_or_b32 v193, v{vWG+3}, 16, v{vWG+2}
        v_lshl_or_b32 v194, v{vWG+5}, 16, v{vWG+4}
        v_lshl_or_b32 v195, v{vWG+7}, 16, v{vWG+6}
        """)
        a.c("role B set-up")
        a(f"""
        s_lshl_b32 s58, s{sJJ}, 5
        v_add_u32 v24, s58, v2                  ; 32J+n
        v_sub_u32 v26, 0x100, v24
        v_sub_u32 v27, 0xff, v24
        s_cmp_ge_u32 s{sJJ}, 4
        s_cselect_b64 vcc, -1, 0
        v_cndmask_b32 v26, v24, v26, vcc
        v_cndmask_b32 v27, v24, v27, vcc
        v_and_b32 v28, 0x7f, v26
        v_cmp_eq_u32 vcc, 0, v28
        v_mul_u32_u24 v25, {G_CS}, v3
        v_lshl_add_u32 v{vGE}, v26, 4, v25
        v_lshl_add_u32 v{vGO}, v27, 4, v25
        v_add_u32 v{vGO}, {G_PS}, v{vGO}
        v_mov_b32 v28, 0x40000000
        v_cndmask_b32 v{vGB}, v{vGE}, v28, vcc
        v_subrev_u32 v{vFA}, 0x100, v0
        v_lshlrev_b32 v{vFA}, 7, v{vFA}
        v_add_u32 v{vFA}, {WS_F1}, v{vFA}
        s_mul_i32 s63, s{sSLOT}, {G_SS}
        s_lshr_b32 s58, s{sLW}, 1               ; kh
        s_mul_i32 s58, s58, {8*G_CS}
        s_add_u32 s63, s63, s58
        s_add_u32 s63, s63, {WS_G}
        """)
        a("s_waitcnt vmcnt(9)\ns_barrier")
        flag_addr(sLW)
        a(f"""
        s_mov_b64 exec, 0xf8000
        buffer_load_dwordx2 {vr(vFD,2)}, v{vFG}, s[{sWS}:{sWS+3}], 0 offen sc1
        s_mov_b64 exec, -1
        s_lshl_b32 s{sM0}, s{sLW}, 11
        s_and_b32 s58, s{sHEAD}, 2
        s_xor_b32 s58, s58, s{sLW}
        s_lshl_b32 s58, s58, 11
        s_lshl_b32 s{sKVO}, s{sHEAD}, 13
        s_add_u32 s{sKVO}, s{sKVO}, s58
        s_lshl_b32 s61, s{sQB}, 18
        s_add_u32 s61, s61, s{sKVO}             ; Q fragments
        v_mov_b32 v{k1.vSA}, 0
        v_and_b32 v24, 15, v1
        v_lshlrev_b32 v24, 3, v24
        v_bfe_u32 v25, v1, 4, 1
        s_and_b32 s58, s{sQB}, {OPT['xf']}
        s_lshr_b32 s58, s58, 2
        v_xor_b32 v25, s58, v25
        v_lshl_add_u32 v{vF2A}, v25, 14, v24
        """)
        common_setup()
        a("s_waitcnt vmcnt(1)\ns_barrier")
        tag_use(a, f"{P}_tagL")
        if OPT['two'] < 0:
            for x in wo_store(): a(x)
        a.c("no polling while this workgroup's urgent stores are on their way")
        a(f"s_cmp_lg_u32 s{k1.sDEL}, 0\ns_cbranch_scc1 {P}_nopre\ns_barrier\n{P}_nopre:")
        if OPT['xp']:
            a("s_mov_b64 exec, 0xf8000")
            a(f"v_cmp_ne_u64 vcc, s[{sN}:{sN+1}], {vr(vFD,2)}\ns_nop 0\ns_cbranch_vccz {P}_h1_ok")
            D = OPT['pd']
            if D == 1: poll(a, P, "h1", vFG, vFD, "0")
            else:
                ld = lambda k: a(f"buffer_load_dwordx2 {vr(40+2*k,2)}, v{vFG}, s[{sWS}:{sWS+3}], 0 offen sc1")
                for k in range(D - 1):
                    ld(k)
                    for _ in range(OPT['gap']): a("s_nop 15")
                a(f"s_mov_b32 s62, 0\n{P}_h1_spin:")
                for k in range(D):
                    ld((k + D - 1) % D)
                    a(f"s_waitcnt vmcnt({D-1})\nv_cmp_ne_u64 vcc, s[{sN}:{sN+1}], {vr(40+2*k,2)}\ns_add_u32 s62, s62, 1\ns_cbranch_vccz {P}_h1_ok")
                a(f"s_cmp_lt_u32 s62, {SPIN_MAX}\ns_cbranch_scc1 {P}_h1_spin\n{P}_h1_ok:")
            a("s_mov_b64 exec, -1")
        else: poll(a, P, "h1", vFG, vFD, "0", 0xfffff)
        stamp(a, 6)
        d0, d1 = kv_dma(0), kv_dma(1)
        for x in d0[0] + d0[1]: a(x)
        a(f"s_add_u32 m0, s{sM0}, {LDS_XB}\ns_nop 0")
        for o in (0, 1024): a(f"buffer_load_dwordx4 v{vOFF}, s[{sWS}:{sWS+3}], s61 offen offset:{o} sc1 lds")
        for x in d0[2] + d0[3] + sum(d1, []): a(x)
        if OPT['early']: a("s_barrier")
        a(f"s_mov_b32 s{sCLS}, 0\ns_waitcnt vmcnt({4 if OPT['b1'] == 6 else 0})\ns_branch {P}_b2")
    def flag_addr(sLW):
        a(f"""
        v_bfe_u32 v24, v1, 1, 2
        v_bfe_u32 v25, v1, 3, 1
        v_lshl_add_u32 v24, v24, 1, v25
        {"v_bfe_u32 v24, v1, 1, 3" if OPT['pri'] else ""}
        v_and_b32 v25, 1, v1
        v_lshl_add_u32 v24, v25, 5, v24
        s_lshl_b32 s58, s{sLW}, 3
        s_add_u32 s58, s58, 32
        v_add_u32 v24, s58, v24
        s_lshl_b32 s58, s{sQB}, 2
        s_add_u32 s58, s58, s{sLW}
        v_mov_b32 v25, s58
        s_mov_b32 vcc_lo, 0xffff0000
        s_mov_b32 vcc_hi, 0
        v_cndmask_b32 v24, v25, v24, vcc
        s_lshr_b32 s58, s{sHEAD}, 2
        s_lshl_b32 s58, s58, 7
        s_add_u32 s58, s58, {WS_FL}
        v_lshl_add_u32 v{vFG}, v24, 10, s58
        """)
    def common_setup():
        a(f"""
        s_load_dwordx2 s[{sOUT}:{sOUT+1}], s[0:1], {KA_OUT}
        s_mov_b32 s{sOUT+2}, 0x400000
        s_mov_b32 s{sOUT+3}, 0x20000
        v_lshlrev_b32 v{vOFF}, 4, v1
        v_lshlrev_b32 v28, 4, v0
        v_add_u32 v28, {LDS_XB}, v28
        v_mov_b32 v{vIDX}, 0xdddd
        """)
        attn.addr_setup(a)
        for i in range(16): a(f"v_mov_b32 v{vO+i}, 0")
        for i in range(4): a(f"v_mov_b32 v{vSN+i}, -1")
    def flag_regs():
        a(f"v_mov_b32 v{vFD}, s{sN}\nv_mov_b32 v{vFD+1}, s{sN+1}\nv_lshlrev_b32 v{vFG}, 3, v1")
    def qkv_post():
        stamp(a, 4)
        wave_flag(a)
        stamp(a, 5)
        a(f"s_barrier\ns_branch {P}_p1done")
    def comp_pre():
        wg_roles(a)
        a(f"s_mov_b64 s[46:47], 0\ns_setprio {OPT['cp']}")
        if OPT['warm']: flag_addr(sWAVE)
        a("s_waitcnt lgkmcnt(0)")
        if OPT['warm']:
            a.c("first touch of the flag lines that the loader waves poll later")
            if OPT['warm'] == 2: a(f"s_cmp_lt_u32 s2, 192\ns_cselect_b32 exec_lo, 0xffff, -1")
            a(f"buffer_load_dwordx2 {vr(vFD,2)}, v{vFG}, s[{sWS}:{sWS+3}], 0 offen {OPT['pfl']}")
            if OPT['warm'] == 2: a("s_mov_b32 exec_lo, -1")
        a(f"""
        s_cmp_lg_u32 s{sWAVE}, 0
        s_cbranch_scc1 {P}_cp1
        """)
        if OPT['codepf'] == 1:
            a.c("pull this kernel's code into L2 (each workgroup a slice)")
            a(f"""
            s_getpc_b64 s[58:59]
            {P}_pc:
            s_lshr_b32 s60, s2, 3
            s_lshl_b32 s60, s60, 4
            v_and_b32 v12, 15, v1
            v_add_u32 v12, s60, v12
            v_lshlrev_b32 v12, 7, v12
            v_min_u32 v12, {P}_end-{P}_pc, v12
            v_mov_b32 v13, s59
            v_add_co_u32 v12, vcc, s58, v12
            s_nop 1
            v_addc_co_u32 v13, vcc, 0, v13, vcc
            global_load_dword v200, v[12:13], off
            """)
        a(f"""
        s_cmp_lg_u32 s2, 0
        s_cbranch_scc1 {P}_cp1
        """)
        a.c("launch tag for the hand-off flags: never equal to a tag of an earlier launch")
        a(f"""
        s_memrealtime s[58:59]
        s_waitcnt lgkmcnt(0)
        s_or_b32 s58, s58, 1
        v_mov_b32 v206, s58
        v_mov_b32 v207, s59
        s_mov_b32 s46, 1
        {P}_cp1:
        """)
        if OPT['np'] < 0: publish('qk')
    def publish(m):
        if m == 'qk':
            a(f"""
            v_mov_b32 v{vTA}, 0
            s_mov_b64 exec, s[46:47]
            global_store_dwordx2 v{vTA}, v[206:207], s[68:69] sc1
            s_mov_b64 exec, -1
            """)
    def fnet_wait(m):
        a.c("tiles that are not urgent start once workgroup 0 is under way and has published the tag")
        a(f"s_cmp_lg_u32 s{sWAVE}, 0\ns_cbranch_scc1 {P}_go{m}\ns_cmp_eq_u32 s{sCLS}, 0\ns_cbranch_scc1 {P}_go{m}")
        tag_load(a)
        tag_use(a, f"{P}_tagw{m}")
        a(f"{P}_go{m}:")
    k1.VSCALE = 2.0 ** VS_LOG2
    k1.MIDPOS = OPT["midpos"]; k1.RMASK = OPT["rm"]; k1.CF = OPT["cf"]; k1.PSF = OPT.get("psf", "sc1"); k1.CPF = OPT["codepf"] == 2; k1.IMMC = OPT["immc"]; k1.PRI = OPT["pri"]; k1.SEQD = OPT["seqd"]; k1.RQ = OPT["rq"]; k1.RD = OPT["rd"]; k1.SPF = OPT["spf"]; k1.FLATE = OPT["flate"]; k1.NTF = OPT["ntf"]; k1.FINIT = OPT["finit"]; k1.FDEL = OPT["np"] >= 0; k1.SEQF = OPT["seqf"]; k1.AMAJ = OPT["amaj"]; k1.MIX = OPT["mix"] and not OPT["pri"]; k1.M16X = OPT.get("m16x", 0); k1.NTX = OPT.get("ntx", ""); k1.NTW = OPT.get("ntw", ""); k1.CHST = OPT.get("chst", 0); k1.SEQ = OPT["seq"]; k1.ORDER = OPT["order"]; k1.DEPTH = OPT["depth"]
    h = OPT['h']
    hooks = {h[0]: lambda m: tag_load(a), h[1]: lambda m: (tag_use(a, f"{P}_tag{m}"), flag_regs())}
    if OPT['np'] >= 0: hooks.update({OPT['np']: publish, -1: fnet_wait})
    k1.phase1(a, P, "sc1", gather, loader_mid, loader_post, comp_pre, hooks, lambda main: (tag_load(a), main and walk(a, P, 10, f'{P}_ret2', 2)), qkv_post, lambda k: pad(a, P, 10 + k, 2, f'{P}_ret2' if k == 1 else None))
    a.c("role A set-up")
    a(f"""
    s_lshl_b32 s58, s2, 7
    s_add_u32 s58, s58, {WS_F1}
    v_add_u32 v{vFA}, s58, v{vFG}
    v_mov_b32 v{vGE}, 0
    v_mov_b32 v{vGB}, 0
    v_mov_b32 v{vGO}, 0
    s_cmp_eq_u32 s{sWAVE}, 0
    s_cselect_b32 s70, 0xffff, 0
    s_mov_b32 s71, 0
    s_and_b32 s63, s{sHEAD}, 3
    s_lshl_b32 s63, s63, 2
    s_add_u32 s63, s63, s{sWAVE}            ; n tile
    s_lshl_b32 s63, s63, 15
    s_add_u32 s63, s63, {WS_WOF}
    s_lshl_b32 s58, s{sQB}, 3
    s_lshr_b32 s59, s{sHEAD}, 2
    s_add_u32 s58, s58, s59
    s_and_b32 s59, s{sQB}, {OPT['xf']}
    s_xor_b32 s58, s58, s59
    s_lshl_b32 s58, s58, 2
    s_add_u32 s58, s58, s{sWAVE}
    s_lshl_b32 s58, s58, 10
    s_add_u32 s58, s58, {WS_F2}
    v_and_b32 v{vF2A}, 7, v1
    v_lshl_add_u32 v{vF2A}, v{vF2A}, 7, s58
    """)
    common_setup()
    walk(a, P, 0, f"{P}_ret1")
    if OPT['early']:
        a("s_barrier")
        late_stores(a, P, 1)
    a(f"""
    {P}_b2:
    s_waitcnt lgkmcnt(0)
    s_barrier
    """)
    stamp(a, 7)
    a(f"ds_read_b128 {vr(vQ,4)}, v28")
    a(f"""
    ds_read_b128 {vr(vK,4)}, v{vKA}
    ds_read_b128 {vr(vV1,4)}, v{vKA} offset:1024
    ds_read_b128 {vr(vV0,4)}, v{vVA}
    """)
    if not OPT['early']: late_stores(a, P, 1)
    a(f"""
    s_waitcnt lgkmcnt(2)
    v_mfma_f32_32x32x16_bf16 {vr(vS[0],16)}, {vr(vK,4)}, {vr(vQ,4)}, 0
    s_waitcnt lgkmcnt(1)
    v_mfma_f32_32x32x16_bf16 {vr(vS[1],16)}, {vr(vV1,4)}, {vr(vQ,4)}, 0
    s_nop 10
    """)
    attn.max16(a, vT0, vS[0], True)
    attn.max16(a, vT0, vS[1], False)
    attn.set_c(a, OPT['shift'])
    a(f"""
    s_nop 1
    v_mfma_f32_32x32x16_bf16 {vr(vS[0],16)}, {vr(vK,4)}, {vr(vQ,4)}, {vr(vC,16)}
    ds_read_b128 {vr(vK,4)}, v{vKA} offset:1024
    s_mov_b32 s65, 0
    s_lshl_b32 s58, s{sQB}, 3
    s_add_u32 s58, s58, s{sWAVE}
    s_lshl_b32 s58, s58, 5
    s_add_u32 s58, s58, s{sHEAD}
    s_and_b32 s59, s{sQB}, {OPT['xf'] & 3}
    s_or_b32 s59, s59, 4
    s_lshl_b32 s59, s59, 5
    s_xor_b32 s73, s58, s59
    s_lshl_b32 s73, s73, 7
    s_add_u32 s73, s73, {WS_F2}
    s_add_u32 s59, s{sQB}, s{sWAVE}
    s_and_b32 s59, s59, {OPT['xo']}
    s_lshl_b32 s59, s59, 2
    s_xor_b32 s72, s58, s59
    s_lshl_b32 s72, s72, 10
    s_add_u32 s72, s72, {WS_OF}
    s_cmp_lt_u32 s{sWAVE}, 4
    s_cbranch_scc0 {P}_roleB
    """)
    attn_role(a, P, 'A')
    a(f".p2align 6\n{P}_roleB:")
    pad(a, P, 0)
    if OPT['dry'] & 1: a("s_nop 0")
    attn_role(a, P, 'B')
    a(f"{P}_attn_done:")
    pad(a, P, 1)
    a(f"""
    s_waitcnt lgkmcnt(0)
    v_smfmac_f32_32x32x32_bf16 {vr(vO,16)}, {vr(vV1,4)}, {vr(vS[1]+8,8)}, v{vIDX}
    s_cmp_lg_u32 s65, 0
    s_nop 9
    s_cbranch_scc1 {P}_fin
    """)
    a.c("run-time check of the max stand-in: row sum below 2^120 and all accumulators finite")
    a(f"v_add_f32 v{vT0}, abs(v{vO}), abs(v{vO+1})")
    for i in range(2, 8): a(f"v_add_f32 v{vT0}, v{vT0}, abs(v{vO+i})")
    a(f"""
    v_mov_b32 v{vT1}, 0x7b800000
    v_cmp_nlt_f32 vcc, v{vO+8}, v{vT1}
    v_mov_b32 v{vT1}, 0x7f000000
    v_cmp_nlt_f32 s[60:61], v{vT0}, v{vT1}
    s_nop 1
    s_or_b64 vcc, vcc, s[60:61]
    s_cbranch_scc1 {P}_fallback
    {P}_fin:
    v_rcp_f32 v{vT0}, v{vO+8}
    s_nop 0
    """)
    for i in range(8): a(f"v_mul_f32 v{vO+i}, v{vO+i}, v{vT0}")
    for i in range(4): a(f"v_cvt_pk_bf16_f32 v{vO+i}, v{vO+2*i}, v{vO+2*i+1}")
    for i in range(4): a(f"v_min_u32 v{vO+i}, -2, v{vO+i}")
    a(f"buffer_store_dwordx4 {vr(vO,4)}, v{vOFF}, s[{sWS}:{sWS+3}], s72 offen sc1")
    stamp(a, 8)
    a(f"""
    v_and_b32 v2, 31, v0
    v_bfe_u32 v3, v0, 5, 1
    s_cmp_lt_u32 s{sWAVE}, 4
    s_cbranch_scc1 {P}_tailA
    """)
    ACC = 24
    pad(a, P, 2)
    a("s_waitcnt vmcnt(2)")
    if OPT['bb']: a("s_barrier")
    for kq in range(4):
        for ty in range(2):
            for par in range(2):
                i = 4*kq + 2*ty + par
                c = "0" if kq == 0 and ty == 0 else vr(ACC+16*par,16)
                a(f"v_mfma_f32_32x32x16_bf16 {vr(ACC+16*par,16)}, {vr(vTW+8*kq+4*ty,4)}, {vr(vG+4*i,4)}, {c}")
    a(f"""
    s_sub_u32 s60, s{sWAVE}, 4
    s_lshl_b32 s61, s60, 12
    s_add_u32 s61, s61, {LDS_XB}
    v_add_u32 v11, s61, v{vOFF}
    s_xor_b32 s61, s60, 2
    s_lshl_b32 s61, s61, 12
    s_add_u32 s61, s61, {LDS_XB}
    v_add_u32 v12, s61, v{vOFF}
    s_lshl_b32 s61, s{sWAVE}, 2
    s_add_u32 s61, s61, {LDS_FLG + 16}
    v_mov_b32 v8, s61
    v_xor_b32 v9, 8, v8
    v_lshlrev_b32 v4, 2, v2
    v_lshl_add_u32 v4, v3, 18, v4
    s_and_b32 s61, s60, 1
    s_lshl_b32 s61, s61, 1
    s_lshr_b32 s60, s60, 1
    s_add_u32 s61, s61, s60
    s_lshl_b32 s61, s61, 9
    s_add_u32 s61, s61, s{sR}
    s_lshl_b32 s61, s61, 11
    s_lshl_b32 s60, s{sJJ}, 7
    s_add_u32 s61, s61, s60
    """)
    for q in range(4):
        a(f"ds_write_b128 v11, {vr(ACC + 16*(q>>1) + 8 + 4*(q&1), 4)} offset:{q*1024}")
    if OPT['bb']:
        a(f"""
        ds_write_b32 v8, v8
        {P}_xwait:
        ds_read_b32 v10, v9
        s_waitcnt lgkmcnt(0)
        v_cmp_eq_u32 vcc, 0, v10
        s_nop 0
        s_cbranch_vccnz {P}_xwait
        """)
    else: a("s_waitcnt lgkmcnt(0)\ns_barrier")
    for q in range(4): a(f"ds_read_b128 {vr(56 + 4*q, 4)}, v12 offset:{q*1024}")
    a("s_waitcnt lgkmcnt(0)")
    for r in range(8):
        a(f"v_add_f32 v{ACC+r}, v{ACC+r}, v{56+r}")
        a(f"v_add_f32 v{ACC+16+r}, v{ACC+16+r}, v{64+r}")
        a(f"v_cvt_pk_bf16_f32 v{72+r}, v{ACC+r}, v{ACC+16+r}")
    if OPT['bw']:
        a.c("keep these stores out of the way of the O fetches")
        a(f"""
        v_and_b32 v9, 7, v0
        v_lshlrev_b32 v9, 2, v9
        v_add_u32 v9, {LDS_FLG}, v9
        {P}_owait:
        ds_read_b32 v10, v9
        s_waitcnt lgkmcnt(0)
        v_cmp_eq_u32 vcc, 0, v10
        s_nop 0
        s_cbranch_vccnz {P}_owait
        """)
    for r in range(8):
        a(f"s_add_u32 s60, s61, {(8*(r//4) + r%4) * 32 * 2048}")
        a(f"buffer_store_dword v{72+r}, v4, s[{sOUT}:{sOUT+3}], s60 offen {OPT['oa']}")
    a(f"s_branch {P}_done")
    ACC, LD, BUF = 24, 40, 72
    sPEND, sDONE, sM = 64, 66, 67
    def loads(k):
        for i in range(4): a(f"buffer_load_dwordx4 {vr(LD+16*k+4*i,4)}, v{vOFF}, s[{sWS}:{sWS+3}], s{58+k} offen offset:{i*1024} sc1")
    pad(a, P, 3)
    a(f"""
    {P}_tailA:
    s_lshl_b32 s60, s{sQB}, 3
    s_lshr_b32 s61, s{sHEAD}, 2
    s_add_u32 s60, s60, s61
    s_add_u32 s59, s61, s{sQB}
    s_and_b32 s59, s59, {OPT['xo']}
    s_lshl_b32 s59, s59, 12
    s_lshl_b32 s58, s60, 15
    s_lshl_b32 s61, s{sWAVE}, 13
    s_add_u32 s58, s58, s61
    s_xor_b32 s58, s58, s59
    s_add_u32 s58, s58, {WS_OF}             ; this wave fetches heads 8w .. 8w+7, two groups of four
    s_xor_b32 s59, s58, 4096
    """)
    def flags(L):
        a(f"""
        v_cmp_ne_u64 vcc, s[{sN}:{sN+1}], {vr(vF2,2)}
        s_cmp_lt_u32 s62, {SPIN_MAX}
        s_cselect_b32 s63, vcc_lo, 0
        """)
        for k in range(2):
            a(f"""
            s_bitcmp1_b32 s{sPEND}, {k+2}
            s_cbranch_scc0 {L}{k}
            s_and_b32 s57, s63, {15 << 4*k}
            s_cbranch_scc1 {L}{k}
            """)
            stamp(a, 11)
            loads(k)
            a(f"s_xor_b32 s{sPEND}, s{sPEND}, {5 << k}\n{L}{k}:")
    a(f"s_mov_b32 s{sPEND}, 12\ns_mov_b32 s62, 0\ns_waitcnt vmcnt(1)")
    a(f"""
    v_add_u32 v12, s61, v{vOFF}
    v_and_b32 v11, 7, v0
    v_lshlrev_b32 v11, 2, v11
    v_add_u32 v11, {LDS_FLG}, v11
    s_lshl_b32 s61, s{sWAVE}, 3
    s_add_u32 s61, s61, {LDS_FLG}
    v_mov_b32 v10, s61
    v_lshlrev_b32 v4, 11, v2
    v_lshl_add_u32 v4, v3, 5, v4
    s_lshl_b32 s60, s60, 16
    s_and_b32 s61, s{sHEAD}, 3
    s_lshl_b32 s61, s61, 2
    s_add_u32 s61, s61, s{sWAVE}
    s_lshl_b32 s61, s61, 6
    s_add_u32 s60, s60, s61
    s_add_u32 s60, s60, 1024
    s_mov_b32 s{sDONE}, 0
    """)
    for i in range(16): a(f"v_mov_b32 v{ACC+i}, 0")
    a("s_barrier")
    stamp(a, 9)
    flags(f"{P}_f0")
    a(f"s_and_b32 s57, s{sPEND}, 12\ns_cbranch_scc0 {P}_round\n{f2load()}")
    a(f"""
    {P}_round:
    s_add_u32 s62, s62, 1
    s_waitcnt vmcnt(0)
    """)
    if OPT['trace']:
        a(f"s_cmp_eq_u32 s{sPEND}, 0\ns_cbranch_scc1 {P}_notr\ns_memrealtime s[74:75]\ns_waitcnt lgkmcnt(0)")
        for r in range(1, 7): a(f"s_cmp_eq_u32 s62, {r}\ns_cselect_b32 s{76+r}, s74, s{76+r}")
        a(f"""
        s_lshl_b32 s89, s89, 4
        s_or_b32 s89, s89, s{sPEND}
        s_bcnt1_i32_b32 s75, s{sDONE}
        s_lshl_b32 s90, s90, 4
        s_or_b32 s90, s90, s75
        s_mov_b32 s86, s74
        {P}_notr:
        """)
    for k in range(2):
        r = LD + 16*k
        a(f"s_bitcmp1_b32 s{sPEND}, {k}\ns_cbranch_scc0 {P}_chk{k}")
        a(f"v_max3_u32 v8, v{r}, v{r+1}, v{r+2}")
        for i in range(3, 15, 2): a(f"v_max3_u32 v8, v8, v{r+i}, v{r+i+1}")
        a(f"""
        v_max_u32 v8, v8, v{r+15}
        v_cmp_eq_u32 vcc, -1, v8
        s_cmp_lt_u32 s62, {SPIN_MAX}
        s_cselect_b64 vcc, vcc, 0
        s_cbranch_vccz {P}_pub{k}
        """)
        loads(k)
        a(f"s_branch {P}_chk{k}")
        if k == 0: pad(a, P, 4)
        a(f"{P}_pub{k}:")
        stamp(a, 10)
        for i in range(4): a(f"ds_write_b128 v12, {vr(r+4*i,4)} offset:{k*4096+i*1024}")
        a(f"""
        ds_write_b32 v10, v10 offset:{4*k}
        s_bitset0_b32 s{sPEND}, {k}
        {P}_chk{k}:
        """)
    a(f"s_and_b32 s57, s{sPEND}, 12\ns_cbranch_scc0 {P}_noflag")
    flags(f"{P}_f1")
    a(f"s_and_b32 s57, s{sPEND}, 12\ns_cbranch_scc0 {P}_noflag\n{f2load()}\n{P}_noflag:")
    a(f"""
    ds_read_b32 v8, v11
    s_waitcnt lgkmcnt(0)
    v_cmp_ne_u32 vcc, 0, v8
    s_nop 0
    s_andn2_b32 s{sM}, vcc_lo, s{sDONE}
    s_and_b32 s{sM}, s{sM}, 0xff
    s_cbranch_scc0 {P}_round
    """)
    if OPT['half']:
        a.c("with a fetch in flight come back to it after four groups at most")
        a(f"""
        s_and_b32 s57, s{sM}, 15
        s_cselect_b32 s57, s57, s{sM}
        s_cmp_eq_u32 s{sPEND}, 0
        s_cselect_b32 s{sM}, s{sM}, s57
        """)
    a(f"""
    s_or_b32 s{sDONE}, s{sDONE}, s{sM}
    s_ff1_i32_b32 s61, s{sM}
    s_lshl_b32 s61, s61, 12
    v_add_u32 v9, s61, v{vOFF}
    """)
    for i in range(4): a(f"ds_read_b128 {vr(BUF+4*i,4)}, v9 offset:{i*1024}")
    for g in range(8):
        a(f"""
        s_bitcmp1_b32 s{sM}, {g}
        s_cbranch_scc0 {P}_grp{g}
        """)
        for i in range(4):
            a(f"s_waitcnt lgkmcnt(3)")
            a(f"v_mfma_f32_32x32x16_bf16 {vr(ACC,16)}, {vr(vWO+16*g+4*i,4)}, {vr(BUF+4*i,4)}, {vr(ACC,16)}")
            if i == 0:
                a(f"""
                s_bitset0_b32 s{sM}, {g}
                s_ff1_i32_b32 s61, s{sM}
                s_and_b32 s61, s61, 7
                v_lshl_add_u32 v9, s61, 12, v{vOFF}
                """)
            a(f"ds_read_b128 {vr(BUF+4*i,4)}, v9 offset:{i*1024}")
        a(f"{P}_grp{g}:")
        if g == 0: pad(a, P, 5)
        if g == 4: pad(a, P, 6, 1, f"{P}_ret1")
    a(f"""
    s_cmp_lg_u32 s{sDONE}, 0xff
    s_cbranch_scc1 {P}_round
    s_nop 8
    """)
    F0 = 40
    for i in range(8): a(f"v_cvt_pk_bf16_f32 v{F0+i}, v{ACC+2*i}, v{ACC+2*i+1}")
    a(f"buffer_store_dwordx4 {vr(F0,4)}, v4, s[{sOUT}:{sOUT+3}], s60 offen {OPT['ob']}")
    a(f"buffer_store_dwordx4 {vr(F0+4,4)}, v4, s[{sOUT}:{sOUT+3}], s60 offen offset:16 {OPT['ob']}")
    stamp(a, 12)
    a(f"{P}_done:")
    stamp_flush(a, 0)
    a(f"{P}_end:\ns_endpgm\n{P}_fallback:")
    attn.addr_setup(a)
    a(f"""
    v_mov_b32 v{vT0}, 0xff800000
    s_movk_i32 s66, 64
    {P}_maxloop:
    ds_read_b128 {vr(vK,4)}, v{vKA}
    v_add_u32 v{vKA}, 0x400, v{vKA}
    s_waitcnt lgkmcnt(0)
    v_mfma_f32_32x32x16_bf16 {vr(vS[0],16)}, {vr(vK,4)}, {vr(vQ,4)}, 0
    s_nop 12
    """)
    attn.max16(a, vT0, vS[0], False)
    a(f"""
    s_sub_u32 s66, s66, 1
    s_cmp_lg_u32 s66, 0
    s_cbranch_scc1 {P}_maxloop
    """)
    attn.set_c(a, 0.0)
    a(f"v_mov_b32 v{vKA}, v{vOFF}")
    attn.prime(a)
    a(f"""
    s_mov_b32 s65, 1
    s_movk_i32 s66, 8
    """)
    a.c("fallback pass (true row max)")
    a(f".p2align 6\n{P}_loop:")
    attn.iteration(a, 6)
    a(f"""
    s_sub_u32 s66, s66, 1
    s_cmp_lg_u32 s66, 0
    s_cbranch_scc1 {P}_loop
    s_branch {P}_attn_done
    """)
    return kernel_header(name) + a.text() + kernel_desc(name, VGPRS, 102)

def header():
    ref = open(f"cdna_kernels/{NAME}.s.ref").read().split("\n")
    return "\n".join(l for l in ref if l.startswith(";") and "@launch" not in l and "Override" not in l and "grid=ceil" not in l) + "\n"
def gen(aslist=True):
    s = header()
    if aslist: s += f"; @launch kernel={NAME}_kernel grid=(256,1,1) block=(512,1,1) lds={LDS_BYTES}\n"
    else: s += f"; @launch grid=(256,1,1) block=(512,1,1) lds={LDS_BYTES}\n"
    s += '.amdgcn_target "amdgcn-amd-amdhsa--gfx950"\n'
    return s + gen_kernel(NAME + "_kernel")
if __name__ == "__main__":
    open(f"fused.s", "w").write(gen(False))
    open(f"fused_list.s", "w").write(gen(True))
```
